```python
import torch

def _softmax(x, axis=-1):
    return torch.softmax(x, dim=axis)
def _gelu(x):
    return torch.nn.functional.gelu(x, approximate="tanh")
def _silu(x):
    return torch.nn.functional.silu(x)
def _sigmoid(x):
    return torch.sigmoid(x)
def _layernorm(x, axis=-1, eps=1e-5):
    m = x.mean(dim=axis, keepdim=True)
    v = x.var(dim=axis, keepdim=True, unbiased=False)
    return (x - m) / torch.sqrt(v + eps)
def _scatter_add(tgt, idx, src, axis=0):
    return tgt.clone().index_add_(axis, idx, src)
def _segment_sum(src, seg, n):
    out = torch.zeros((n,) + src.shape[1:], dtype=src.dtype)
    return out.index_add_(0, seg, src)
def _pad(x, pw):
    flat = tuple(v for pair in reversed(pw) for v in pair)
    return torch.nn.functional.pad(x, flat)

kernel_name = 'standalone__fused_io_aware_attn__prompt'

def setup_inputs():

    _w = (lambda a: (lambda t: t.to(torch.bfloat16) if t.is_floating_point() else t)(torch.as_tensor(a)))
    B, H, S = 1, 32, 2048
    Dh = max(1, 640 // 32)
    return {
        "q": _w((lambda *s: torch.randn(*s, dtype=torch.bfloat16) * 0.8)(B, H, S, Dh)),
        "k": _w((lambda *s: torch.randn(*s, dtype=torch.bfloat16) * 0.8)(B, H, S, Dh)),
        "v": _w((lambda *s: torch.randn(*s, dtype=torch.bfloat16) * 0.05)(B, H, S, Dh)),
    }

def reference(q, k, v):
    scale = q.shape[-1] ** -0.5
    s = torch.einsum('bhqd,bhkd->bhqk', q, k) * scale
    p = _softmax(s, axis=-1)
    return torch.einsum('bhqk,bhkd->bhqd', p, v)
```

```python
import sys, math, struct
NAME="standalone__fused_io_aware_attn__prompt"
def f32bits(x): return struct.unpack("<I",struct.pack("<f",x))[0]
def v(b,n=1): return f"v[{b}:{b+n-1}]" if n>1 else f"v{b}"
def s(b,n=1): return f"s[{b}:{b+n-1}]" if n>1 else f"s{b}"

class Cfg:
    barriers=[0,2,6,14]
    prio={}
    prio0=None
    stamps=False
    fallback=True
    G=3

def gen(cfg):
    L=[]
    A=L.append
    HEADB=81920
    KBASE=4096; KHALF=38912; VBASE=81920; VHALF=40960
    G=cfg.G
    NAV=(32+G-1)//G
    idx=1; ak=2; t0=3; t1=4; t2=5; vlane16=6; vq=7
    Qa16=8; Qb16=12; Q8=16
    K16=[20,28]; K8=[24,32]
    V=[36,44]
    Oa=52; Ob=68
    S=[84,116]
    av=148
    NV=av+NAV
    sQ=8; sK=12; sD=16; sO=20
    sw=24; sj=25; skh=26; sm0=27; ssrc=28; sisV=29; stmp=30; stmp2=31
    sT=40
    nst=[0]
    def stamp():
        if cfg.stamps:
            A(f"s_memrealtime {s(sT+2*nst[0],2)}")
            nst[0]+=1
    def exps(base, lo, n=4):
        for i in range(lo,lo+n): A(f"v_exp_f32 v{base+i}, v{base+i}")
    def smf(O,Aa,B): A(f"v_smfmac_f32_32x32x32_bf16 {v(O,16)}, {v(Aa,4)}, {v(B,8)}, v{idx}")
    def mf16(D,Aa,B): A(f"v_mfma_f32_32x32x16_bf16 {v(D,16)}, {v(Aa,4)}, {v(B,4)}, {v(D,16)}")
    def mf2b(D,Aa,B): A(f"v_mfma_f32_32x32x4_2b_bf16 {v(D,32)}, {v(Aa,2)}, {v(B,2)}, 0 cbsz:1 abid:1")
    def rdV(t,dst):
        for j,o in enumerate([0,160,640,800]):
            A(f"ds_read_b64_tr_b16 {v(dst+2*j,2)}, v{av+t//G} offset:{(t%G)*1280+o}")
    def rdK(t,p):
        A(f"ds_read_b64 {v(K16[p],2)}, v{ak} offset:{1280*t}")
        A(f"ds_read_b64 {v(K16[p]+2,2)}, v{ak} offset:{1280*t+8}")
        A(f"ds_read_b64 {v(K8[p],2)}, v{ak} offset:{1280*t+16}")

    stamp()
    A("s_cmp_ge_u32 s2, 256")
    A("s_cbranch_scc1 L_end")
    A("s_load_dwordx4 s[8:11], s[0:1], 0      ; q, k")
    A("s_load_dwordx4 s[16:19], s[0:1], 16    ; v, out")
    if cfg.stamps: A("s_load_dwordx2 s[36:37], s[0:1], 40    ; ws")
    A(f"v_lshrrev_b32 v{t0}, 6, v0")
    A("v_and_b32 v0, 63, v0                   ; lane")
    A(f"v_readfirstlane_b32 s{sw}, v{t0}")
    A("s_and_b32 s3, s2, 7")
    A("s_lshr_b32 s4, s2, 6")
    A("s_lshl_b32 s4, s4, 3")
    A("s_add_u32 s3, s3, s4                   ; head")
    A(f"s_mul_i32 s3, s3, {HEADB}")
    A("s_bfe_u32 s4, s2, 0x30003")
    A(f"s_and_b32 s{sj}, s{sw}, 3")
    A(f"s_lshr_b32 s{skh}, s{sw}, 2")
    A("s_lshl_b32 s4, s4, 2")
    A(f"s_add_u32 s4, s4, s{sj}")
    A("s_mul_i32 s4, s4, 2560")
    A(f"v_and_b32 v{t0}, 31, v0")
    A(f"v_lshrrev_b32 v{t1}, 5, v0            ; h")
    A(f"v_mul_u32_u24 v{vq}, 40, v{t0}")
    A(f"v_lshl_add_u32 v{vq}, v{t1}, 4, v{vq}  ; row*40 + 16h")
    A(f"v_mul_u32_u24 v{t2}, 40, v0           ; lane*40")
    A(f"v_lshlrev_b32 v{vlane16}, 4, v0")
    A(f"s_and_b32 s{sisV}, s{sw}, 1")
    A(f"s_bfe_u32 s5, s{sw}, 0x10001")
    A(f"s_lshl_b32 s6, s{skh}, 10             ; parity*1024")
    A(f"s_mul_i32 s{ssrc}, s5, {VHALF}")
    A(f"s_add_u32 s{ssrc}, s{ssrc}, s6")
    A(f"s_add_u32 s{sm0}, s{ssrc}, {VBASE}")
    A(f"s_mul_i32 s7, s5, {KHALF}")
    A("s_add_u32 s7, s7, s6")
    A(f"s_add_u32 s7, s7, {KBASE}")
    A(f"s_add_u32 s5, s{ssrc}, 2048            ; K: src")
    A(f"s_cmp_eq_u32 s{sisV}, 1")
    A(f"s_cselect_b32 s{sm0}, s{sm0}, s7")
    A(f"s_cselect_b32 s{ssrc}, s{ssrc}, s5")
    A(f"s_mul_i32 s{stmp}, s{skh}, {VHALF}")
    A("s_waitcnt lgkmcnt(0)")
    stamp()
    A("s_add_u32 s12, s10, s3")
    A("s_addc_u32 s13, s11, 0")
    A("s_add_u32 s8, s8, s3")
    A("s_addc_u32 s9, s9, 0")
    A("s_add_u32 s20, s18, s3")
    A("s_addc_u32 s21, s19, 0")
    A("s_add_u32 s32, s16, s3")
    A("s_addc_u32 s33, s17, 0")
    A(f"s_cmp_eq_u32 s{sisV}, 1")
    A("s_cselect_b32 s16, s32, s12")
    A("s_cselect_b32 s17, s33, s13")
    for b in (sQ,sK,sD,sO):
        A(f"s_mov_b32 s{b+2}, {HEADB}")
        A(f"s_mov_b32 s{b+3}, 0x20000")
    ndirect=7
    def dma(i):
        if i%2==0:
            A(f"s_mov_b32 m0, s{sm0}")
            A("s_nop 0")
        A(f"buffer_load_dwordx4 v{vlane16}, {s(sD,4)}, s{ssrc} offen offset:{2048*(i%2)} lds")
        if i%2==1:
            A(f"s_add_u32 s{sm0}, s{sm0}, 4096")
            A(f"s_add_u32 s{ssrc}, s{ssrc}, 4096")
    dma(0)
    A(f"buffer_load_dwordx2 {v(K8[0],2)}, v{vq}, {s(sK,4)}, s{stmp} offen offset:16")
    A(f"buffer_load_dwordx2 {v(Q8,2)}, v{t2}, {s(sQ,4)}, s4 offen offset:32")
    A(f"buffer_load_dwordx4 {v(K16[0],4)}, v{vq}, {s(sK,4)}, s{stmp} offen")
    A(f"buffer_load_dwordx4 {v(Qa16,4)}, v{vq}, {s(sQ,4)}, s4 offen")
    A(f"buffer_load_dwordx4 {v(Qb16,4)}, v{vq}, {s(sQ,4)}, s4 offen offset:1280")
    A(f"buffer_load_dwordx2 {v(K8[1],2)}, v{vq}, {s(sK,4)}, s{stmp} offen offset:{1280+16}")
    A(f"buffer_load_dwordx4 {v(K16[1],4)}, v{vq}, {s(sK,4)}, s{stmp} offen offset:1280")
    for i in range(1,19): dma(i)
    A(f"s_cmp_eq_u32 s{sisV}, 0")
    A("s_cbranch_scc1 L_nolast")
    dma(19)
    A("L_nolast:")
    stamp()
    A(f"v_mov_b32 v{idx}, 0xdddddddd")
    A(f"s_lshl_b32 s5, s{sw}, 9")
    A(f"v_lshl_add_u32 v{S[0]}, v0, 3, s5")
    A(f"v_mov_b32 v{S[0]+2}, 0x3f80")
    A(f"v_mov_b32 v{S[0]+3}, 0")
    A(f"ds_write_b64 v{S[0]}, {v(S[0]+2,2)}")
    A(f"s_mul_i32 s5, s{skh}, {KHALF}")
    A(f"s_add_u32 s5, s5, {KBASE-2048}")
    A(f"v_add_u32 v{ak}, s5, v{vq}")
    A(f"v_bfe_u32 v{t0}, v0, 2, 2             ; r")
    A(f"v_lshl_add_u32 v{t0}, v{t1}, 3, v{t0}")
    A(f"v_mul_u32_u24 v{t0}, 40, v{t0}")
    A(f"v_and_b32 v{t2}, 1, v0")
    A(f"v_lshl_add_u32 v{t0}, v{t2}, 4, v{t0}  ; + 16*(c&1)")
    A(f"v_bfe_u32 v{t2}, v0, 1, 1")
    A(f"v_lshl_add_u32 v{t0}, v{t2}, 3, v{t0}  ; + 8*(c>>1)")
    A(f"v_bfe_u32 v{t2}, v0, 4, 1")
    A(f"v_lshl_add_u32 v{t0}, v{t2}, 5, v{t0}  ; + 32*g")
    A(f"s_add_u32 s5, s{stmp}, {VBASE}")
    A(f"v_add_u32 v{t0}, s5, v{t0}")
    A(f"v_and_b32 v{t2}, 19, v0               ; g*16 + c")
    A(f"v_cmp_lt_u32 vcc, 16, v{t2}")
    A(f"v_cmp_eq_u32 s[6:7], 17, v{t2}")
    A(f"v_mov_b32 v{S[0]+4}, 0x40000")
    A(f"v_mov_b32 v{S[0]+5}, 224")
    A(f"v_cndmask_b32 v{S[0]+4}, v{S[0]+4}, v{S[0]+5}, s[6:7]")
    A(f"v_mov_b32 v{S[0]+5}, {G*1280}")
    A(f"v_cndmask_b32 v{av}, v{t0}, v{S[0]+4}, vcc")
    A(f"v_cndmask_b32 v{S[0]+5}, v{S[0]+5}, 0, vcc")
    for i in range(1,NAV): A(f"v_add_u32 v{av+i}, v{av+i-1}, v{S[0]+5}")
    for i in range(32): A(f"v_mov_b32 v{Oa+i}, 0")
    c=math.log2(math.e)/math.sqrt(20.0)
    A(f"s_mov_b32 s5, {f32bits(c):#x}          ; log2(e)/sqrt(20)")
    def ndma_needed(tK,tV):
        tK=min(tK,31); tV=min(tV,31)
        cV=(1280*(tV+1)-1)//1024; nV=cV//2+1
        cK=(1280*(tK+1)-1)//1024; nK=(cK-2)//2+1 if cK>=2 else 0
        return min(20-nV, 19-nK)
    A("s_waitcnt vmcnt(18)")
    stamp()
    for r in [Q8,Q8+1]+list(range(Qa16,Qa16+8)):
        A(f"v_lshlrev_b32 v{t0}, 16, v{r}")
        A(f"v_and_b32 v{t2}, 0xffff0000, v{r}")
        A(f"v_mul_f32 v{t0}, s5, v{t0}")
        A(f"v_mul_f32 v{t2}, s5, v{t2}")
        A(f"v_cvt_pk_bf16_f32 v{r}, v{t0}, v{t2}")
        if r==Q8+1:
            A("s_nop 1")
            mf2b(S[0],K8[0],Q8)
    A("s_nop 1")
    mf16(S[0],K16[0],Qa16)
    bars=sorted(cfg.barriers)
    def barrier(t):
        nxt=[b for b in bars if b>t]
        last=(nxt[0]-1) if nxt else 31
        A(f"s_waitcnt vmcnt({ndma_needed(last+2,last+1)}) lgkmcnt(0)")
        A("s_barrier")
    barrier(0)
    stamp()
    rdV(0,V[0])
    A("s_nop 4")
    if cfg.prio0 is not None: A(f"s_setprio {cfg.prio0}")
    for t in range(32):
        p=t&1;q=p^1
        Sa=S[p];Sb=Sa+16;Na=S[q];Nb=Na+16
        if t in cfg.prio: A(f"s_setprio {cfg.prio[t]}")
        mf16(Sb,K16[p],Qb16); exps(Sa,0)
        if t>0: smf(Ob,V[q]+4,Nb+8)
        exps(Sa,4)
        if t in bars and t>0: barrier(t)
        else: A("s_waitcnt lgkmcnt(0)")
        if t+2<32: rdK(t+2,p)
        if t+1<32: rdV(t+1,V[q])
        if t+1<32: mf2b(Na,K8[q],Q8)
        exps(Sa,8,8)
        smf(Oa,V[p],Sa); exps(Sb,0)
        smf(Oa,V[p]+4,Sa+8); exps(Sb,4)
        if t+1<32: mf16(Na,K16[q],Qa16)
        exps(Sb,8)
        smf(Ob,V[p],Sb); exps(Sb,12)
    A("s_nop 1")
    smf(Ob,V[1]+4,S[1]+16+8)
    stamp()
    A(f"s_mul_i32 s5, s{sw}, 3072")
    A(f"s_add_u32 s5, s5, {VBASE}")
    assert max(bars)>=0
    A(f"s_xor_b32 s6, s{sw}, 4")
    A(f"s_mul_i32 s6, s6, 3072")
    A(f"s_add_u32 s6, s6, {VBASE}")
    A(f"v_add_u32 v{t0}, s5, v{vlane16}")
    A(f"v_add_u32 v{t1}, s6, v{vlane16}")
    A("s_barrier")
    A(f"s_cmp_eq_u32 s{skh}, 0")
    A("s_cbranch_scc1 L_kh0")
    for i in range(3): A(f"ds_write_b128 v{t0}, {v(Oa+4*i,4)} offset:{1024*i}")
    A("s_nop 7")
    for i in range(12): A(f"v_mov_b32 v{Oa+i}, v{Ob+i}")
    A("s_add_u32 s4, s4, 1280")
    A("s_branch L_join")
    A("L_kh0:")
    A("s_nop 7")
    for i in range(3): A(f"ds_write_b128 v{t0}, {v(Ob+4*i,4)} offset:{1024*i}")
    A("L_join:")
    A("s_waitcnt lgkmcnt(0)")
    A("s_barrier")
    X=S[0]
    for i in range(3): A(f"ds_read_b128 {v(X+4*i,4)}, v{t1} offset:{1024*i}")
    A("s_waitcnt lgkmcnt(0)")
    for i in range(12): A(f"v_add_f32 v{Oa+i}, v{Oa+i}, v{X+i}")
    lsum=X+12
    A(f"v_mov_b32 v{X+13}, v{Oa+8}")
    A(f"v_mov_b32 v{lsum}, v{Oa+8}")
    A("s_nop 1")
    A(f"v_permlane32_swap_b32 v{X+13}, v{lsum}")
    A("s_nop 1")
    A(f"v_rcp_f32 v{X+14}, v{lsum}")
    A("s_nop 0")
    for i in range(12): A(f"v_mul_f32 v{X+i}, v{Oa+i}, v{X+14}")
    P=X+16
    for i in range(6): A(f"v_cvt_pk_bf16_f32 v{P+i}, v{X+2*i}, v{X+2*i+1}")
    A(f"buffer_store_dwordx4 {v(P,4)}, v{vq}, {s(sO,4)}, s4 offen")
    A("s_mov_b32 exec_hi, 0")
    A(f"buffer_store_dwordx2 {v(P+4,2)}, v{vq}, {s(sO,4)}, s4 offen offset:32")
    A("s_mov_b64 exec, -1")
    if cfg.stamps:
        A("s_waitcnt vmcnt(0)")
        stamp()
        A("s_waitcnt lgkmcnt(0)")
        A(f"s_lshl_b32 s5, s2, 3")
        A(f"s_add_u32 s5, s5, s{sw}")
        A(f"s_lshl_b32 s5, s5, 6")
        A(f"v_mov_b32 v{t0}, s5")
        A("s_mov_b64 exec, 1")
        for i in range(nst[0]):
            A(f"v_mov_b32 v{t1}, s{sT+2*i}")
            A(f"global_store_dword v{t0}, v{t1}, s[36:37] offset:{4*i}")
    A("L_end:")
    A("s_endpgm")
    hdr=f"""; fused attention forward, B=1 H=32 S=2048 Dh=20, bf16  (generated by gen/genY.py)
; @launch grid=(256,1,1) block=(512,1,1) lds=163840
.amdgcn_target "amdgcn-amd-amdhsa--gfx950"
.text
.globl {NAME}_kernel
.p2align 8
.type {NAME}_kernel,@function
{NAME}_kernel:
"""
    nv=(NV+7)//8*8
    ftr=f""".section .rodata,"a"
.p2align 6
.amdhsa_kernel {NAME}_kernel
  .amdhsa_next_free_vgpr {nv}
  .amdhsa_next_free_sgpr 64
  .amdhsa_accum_offset {nv}
  .amdhsa_group_segment_fixed_size 0
  .amdhsa_kernarg_size 48
  .amdhsa_user_sgpr_count 2
  .amdhsa_user_sgpr_kernarg_segment_ptr 1
  .amdhsa_system_sgpr_workgroup_id_x 1
.end_amdhsa_kernel
"""
    body="\n".join((x if x.endswith(":") else "    "+x) for x in L)
    return hdr+body+"\n"+ftr

if __name__=="__main__":
    cfg=Cfg()
    out=sys.argv[1]
    for a in sys.argv[2:]:
        k,val=a.split("=",1)
        setattr(cfg,k,eval(val))
    open(out,"w").write(gen(cfg))
```

```python
import sys, math, struct
NAME="standalone__fused_io_aware_attn__prompt"
def f32bits(x): return struct.unpack("<I",struct.pack("<f",x))[0]
def v(b,n=1): return f"v[{b}:{b+n-1}]" if n>1 else f"v{b}"
def s(b,n=1): return f"s[{b}:{b+n-1}]" if n>1 else f"s{b}"

class Cfg:
    barriers=[0,2,6,14]
    prio={}
    prio0=None
    stamps=False
    fallback=True
    G=3

def gen(cfg):
    L=[]
    A=L.append
    HEADB=81920
    KBASE=4096; KHALF=38912; VBASE=81920; VHALF=40960
    G=cfg.G
    NAV=(32+G-1)//G
    idx=1; ak=2; t0=3; t1=4; t2=5; vlane16=6; vq=7
    Qa16=8; Qb16=12; Q8=16
    K16=[20,28]; K8=[24,32]
    V=[36,44]
    Oa=52; Ob=68
    S=[84,116]
    av=148
    NV=av+NAV
    sQ=8; sK=12; sD=16; sO=20
    sw=24; sj=25; skh=26; sm0=27; ssrc=28; sisV=29; stmp=30; stmp2=31
    sT=40
    nst=[0]
    def stamp():
        if cfg.stamps:
            A(f"s_memrealtime {s(sT+2*nst[0],2)}")
            nst[0]+=1
    def exps(base, lo, n=4):
        for i in range(lo,lo+n): A(f"v_exp_f32 v{base+i}, v{base+i}")
    def smf(O,Aa,B): A(f"v_smfmac_f32_32x32x32_bf16 {v(O,16)}, {v(Aa,4)}, {v(B,8)}, v{idx}")
    def mf16(D,Aa,B): A(f"v_mfma_f32_32x32x16_bf16 {v(D,16)}, {v(Aa,4)}, {v(B,4)}, {v(D,16)}")
    def mf2b(D,Aa,B): A(f"v_mfma_f32_32x32x4_2b_bf16 {v(D,32)}, {v(Aa,2)}, {v(B,2)}, 0 cbsz:1 abid:1")
    def rdV(t,dst):
        for j,o in enumerate([0,160,640,800]):
            A(f"ds_read_b64_tr_b16 {v(dst+2*j,2)}, v{av+t//G} offset:{(t%G)*1280+o}")
    def rdK(t,p):
        A(f"ds_read_b64 {v(K16[p],2)}, v{ak} offset:{1280*t}")
        A(f"ds_read_b64 {v(K16[p]+2,2)}, v{ak} offset:{1280*t+8}")
        A(f"ds_read_b64 {v(K8[p],2)}, v{ak} offset:{1280*t+16}")

    stamp()
    A("s_cmp_ge_u32 s2, 256")
    A("s_cbranch_scc1 L_end")
    A("s_load_dwordx4 s[8:11], s[0:1], 0      ; q, k")
    A("s_load_dwordx4 s[16:19], s[0:1], 16    ; v, out")
    if cfg.stamps: A("s_load_dwordx2 s[36:37], s[0:1], 40    ; ws")
    A(f"v_lshrrev_b32 v{t0}, 6, v0")
    A("v_and_b32 v0, 63, v0                   ; lane")
    A(f"v_readfirstlane_b32 s{sw}, v{t0}")
    A("s_and_b32 s3, s2, 7")
    A("s_lshr_b32 s4, s2, 6")
    A("s_lshl_b32 s4, s4, 3")
    A("s_add_u32 s3, s3, s4                   ; head")
    A(f"s_mul_i32 s3, s3, {HEADB}")
    A("s_bfe_u32 s4, s2, 0x30003")
    A(f"s_and_b32 s{sj}, s{sw}, 3")
    A(f"s_lshr_b32 s{skh}, s{sw}, 2")
    A("s_lshl_b32 s4, s4, 2")
    A(f"s_add_u32 s4, s4, s{sj}")
    A("s_mul_i32 s4, s4, 2560")
    A(f"v_and_b32 v{t0}, 31, v0")
    A(f"v_lshrrev_b32 v{t1}, 5, v0            ; h")
    A(f"v_mul_u32_u24 v{vq}, 40, v{t0}")
    A(f"v_lshl_add_u32 v{vq}, v{t1}, 4, v{vq}  ; row*40 + 16h")
    A(f"v_mul_u32_u24 v{t2}, 40, v0           ; lane*40")
    A(f"v_lshlrev_b32 v{vlane16}, 4, v0")
    A(f"s_and_b32 s{sisV}, s{sw}, 1")
    A(f"s_bfe_u32 s5, s{sw}, 0x10001")
    A(f"s_lshl_b32 s6, s{skh}, 10             ; parity*1024")
    A(f"s_mul_i32 s{ssrc}, s5, {VHALF}")
    A(f"s_add_u32 s{ssrc}, s{ssrc}, s6")
    A(f"s_add_u32 s{sm0}, s{ssrc}, {VBASE}")
    A(f"s_mul_i32 s7, s5, {KHALF}")
    A("s_add_u32 s7, s7, s6")
    A(f"s_add_u32 s7, s7, {KBASE}")
    A(f"s_add_u32 s5, s{ssrc}, 2048            ; K: src")
    A(f"s_cmp_eq_u32 s{sisV}, 1")
    A(f"s_cselect_b32 s{sm0}, s{sm0}, s7")
    A(f"s_cselect_b32 s{ssrc}, s{ssrc}, s5")
    A(f"s_mul_i32 s{stmp}, s{skh}, {VHALF}")
    A("s_waitcnt lgkmcnt(0)")
    stamp()
    A("s_add_u32 s12, s10, s3")
    A("s_addc_u32 s13, s11, 0")
    A("s_add_u32 s8, s8, s3")
    A("s_addc_u32 s9, s9, 0")
    A("s_add_u32 s20, s18, s3")
    A("s_addc_u32 s21, s19, 0")
    A("s_add_u32 s32, s16, s3")
    A("s_addc_u32 s33, s17, 0")
    A(f"s_cmp_eq_u32 s{sisV}, 1")
    A("s_cselect_b32 s16, s32, s12")
    A("s_cselect_b32 s17, s33, s13")
    for b in (sQ,sK,sD,sO):
        A(f"s_mov_b32 s{b+2}, {HEADB}")
        A(f"s_mov_b32 s{b+3}, 0x20000")
    ndirect=7
    def dma(i):
        if i%2==0:
            A(f"s_mov_b32 m0, s{sm0}")
            A("s_nop 0")
        A(f"buffer_load_dwordx4 v{vlane16}, {s(sD,4)}, s{ssrc} offen offset:{2048*(i%2)} lds")
        if i%2==1:
            A(f"s_add_u32 s{sm0}, s{sm0}, 4096")
            A(f"s_add_u32 s{ssrc}, s{ssrc}, 4096")
    dma(0)
    A(f"buffer_load_dwordx2 {v(K8[0],2)}, v{vq}, {s(sK,4)}, s{stmp} offen offset:16")
    A(f"buffer_load_dwordx2 {v(Q8,2)}, v{t2}, {s(sQ,4)}, s4 offen offset:32")
    A(f"buffer_load_dwordx4 {v(K16[0],4)}, v{vq}, {s(sK,4)}, s{stmp} offen")
    A(f"buffer_load_dwordx4 {v(Qa16,4)}, v{vq}, {s(sQ,4)}, s4 offen")
    A(f"buffer_load_dwordx4 {v(Qb16,4)}, v{vq}, {s(sQ,4)}, s4 offen offset:1280")
    A(f"buffer_load_dwordx2 {v(K8[1],2)}, v{vq}, {s(sK,4)}, s{stmp} offen offset:{1280+16}")
    A(f"buffer_load_dwordx4 {v(K16[1],4)}, v{vq}, {s(sK,4)}, s{stmp} offen offset:1280")
    for i in range(1,19): dma(i)
    A(f"s_cmp_eq_u32 s{sisV}, 0")
    A("s_cbranch_scc1 L_nolast")
    dma(19)
    A("L_nolast:")
    stamp()
    A(f"v_mov_b32 v{idx}, 0xdddddddd")
    A(f"s_lshl_b32 s5, s{sw}, 9")
    A(f"v_lshl_add_u32 v{S[0]}, v0, 3, s5")
    A(f"v_mov_b32 v{S[0]+2}, 0x3f80")
    A(f"v_mov_b32 v{S[0]+3}, 0")
    A(f"ds_write_b64 v{S[0]}, {v(S[0]+2,2)}")
    A(f"s_mul_i32 s5, s{skh}, {KHALF}")
    A(f"s_add_u32 s5, s5, {KBASE-2048}")
    A(f"v_add_u32 v{ak}, s5, v{vq}")
    A(f"v_bfe_u32 v{t0}, v0, 2, 2             ; r")
    A(f"v_lshl_add_u32 v{t0}, v{t1}, 3, v{t0}")
    A(f"v_mul_u32_u24 v{t0}, 40, v{t0}")
    A(f"v_and_b32 v{t2}, 1, v0")
    A(f"v_lshl_add_u32 v{t0}, v{t2}, 4, v{t0}  ; + 16*(c&1)")
    A(f"v_bfe_u32 v{t2}, v0, 1, 1")
    A(f"v_lshl_add_u32 v{t0}, v{t2}, 3, v{t0}  ; + 8*(c>>1)")
    A(f"v_bfe_u32 v{t2}, v0, 4, 1")
    A(f"v_lshl_add_u32 v{t0}, v{t2}, 5, v{t0}  ; + 32*g")
    A(f"s_add_u32 s5, s{stmp}, {VBASE}")
    A(f"v_add_u32 v{t0}, s5, v{t0}")
    A(f"v_and_b32 v{t2}, 19, v0               ; g*16 + c")
    A(f"v_cmp_lt_u32 vcc, 16, v{t2}")
    A(f"v_cmp_eq_u32 s[6:7], 17, v{t2}")
    A(f"v_mov_b32 v{S[0]+4}, 0x40000")
    A(f"v_mov_b32 v{S[0]+5}, 224")
    A(f"v_cndmask_b32 v{S[0]+4}, v{S[0]+4}, v{S[0]+5}, s[6:7]")
    A(f"v_mov_b32 v{S[0]+5}, {G*1280}")
    A(f"v_cndmask_b32 v{av}, v{t0}, v{S[0]+4}, vcc")
    A(f"v_cndmask_b32 v{S[0]+5}, v{S[0]+5}, 0, vcc")
    for i in range(1,NAV): A(f"v_add_u32 v{av+i}, v{av+i-1}, v{S[0]+5}")
    for i in range(32): A(f"v_mov_b32 v{Oa+i}, 0")
    c=math.log2(math.e)/math.sqrt(20.0)
    A(f"s_mov_b32 s5, {f32bits(c):#x}          ; log2(e)/sqrt(20)")
    def ndma_needed(tK,tV):
        tK=min(tK,31); tV=min(tV,31)
        cV=(1280*(tV+1)-1)//1024; nV=cV//2+1
        cK=(1280*(tK+1)-1)//1024; nK=(cK-2)//2+1 if cK>=2 else 0
        return min(20-nV, 19-nK)
    A("s_waitcnt vmcnt(18)")
    stamp()
    for r in [Q8,Q8+1]+list(range(Qa16,Qa16+8)):
        A(f"v_lshlrev_b32 v{t0}, 16, v{r}")
        A(f"v_and_b32 v{t2}, 0xffff0000, v{r}")
        A(f"v_mul_f32 v{t0}, s5, v{t0}")
        A(f"v_mul_f32 v{t2}, s5, v{t2}")
        A(f"v_cvt_pk_bf16_f32 v{r}, v{t0}, v{t2}")
        if r==Q8+1:
            A("s_nop 1")
            mf2b(S[0],K8[0],Q8)
    A("s_nop 1")
    mf16(S[0],K16[0],Qa16)
    bars=sorted(cfg.barriers)
    def barrier(t):
        nxt=[b for b in bars if b>t]
        last=(nxt[0]-1) if nxt else 31
        A(f"s_waitcnt vmcnt({ndma_needed(last+2,last+1)}) lgkmcnt(0)")
        A("s_barrier")
    barrier(0)
    stamp()
    if cfg.stamps: A("s_memtime s[60:61]")
    rdV(0,V[0])
    A("s_nop 4")
    if cfg.prio0 is not None: A(f"s_setprio {cfg.prio0}")
    for t in range(32):
        p=t&1;q=p^1
        Sa=S[p];Sb=Sa+16;Na=S[q];Nb=Na+16
        if t in cfg.prio: A(f"s_setprio {cfg.prio[t]}")
        mf16(Sb,K16[p],Qb16); exps(Sa,0)
        if t>0: smf(Ob,V[q]+4,Nb+8)
        exps(Sa,4)
        if t in bars and t>0: barrier(t)
        else: A("s_waitcnt lgkmcnt(0)")
        if t+2<32: rdK(t+2,p)
        if t+1<32: rdV(t+1,V[q])
        if t+1<32: mf2b(Na,K8[q],Q8)
        exps(Sa,8,8)
        smf(Oa,V[p],Sa); exps(Sb,0)
        smf(Oa,V[p]+4,Sa+8); exps(Sb,4)
        if t+1<32: mf16(Na,K16[q],Qa16)
        exps(Sb,8)
        smf(Ob,V[p],Sb); exps(Sb,12)
    A("s_nop 1")
    smf(Ob,V[1]+4,S[1]+16+8)
    stamp()
    if cfg.stamps: A("s_memtime s[62:63]")
    A(f"s_mul_i32 s5, s{sw}, 3072")
    A(f"s_add_u32 s5, s5, {VBASE}")
    assert max(bars)>=0
    A(f"s_xor_b32 s6, s{sw}, 4")
    A(f"s_mul_i32 s6, s6, 3072")
    A(f"s_add_u32 s6, s6, {VBASE}")
    A(f"v_add_u32 v{t0}, s5, v{vlane16}")
    A(f"v_add_u32 v{t1}, s6, v{vlane16}")
    A("s_barrier")
    A(f"s_cmp_eq_u32 s{skh}, 0")
    A("s_cbranch_scc1 L_kh0")
    for i in range(3): A(f"ds_write_b128 v{t0}, {v(Oa+4*i,4)} offset:{1024*i}")
    A("s_nop 7")
    for i in range(12): A(f"v_mov_b32 v{Oa+i}, v{Ob+i}")
    A("s_add_u32 s4, s4, 1280")
    A("s_branch L_join")
    A("L_kh0:")
    A("s_nop 7")
    for i in range(3): A(f"ds_write_b128 v{t0}, {v(Ob+4*i,4)} offset:{1024*i}")
    A("L_join:")
    A("s_waitcnt lgkmcnt(0)")
    A("s_barrier")
    X=S[0]
    for i in range(3): A(f"ds_read_b128 {v(X+4*i,4)}, v{t1} offset:{1024*i}")
    A("s_waitcnt lgkmcnt(0)")
    for i in range(12): A(f"v_add_f32 v{Oa+i}, v{Oa+i}, v{X+i}")
    lsum=X+12
    A(f"v_mov_b32 v{X+13}, v{Oa+8}")
    A(f"v_mov_b32 v{lsum}, v{Oa+8}")
    A("s_nop 1")
    A(f"v_permlane32_swap_b32 v{X+13}, v{lsum}")
    A("s_nop 1")
    A(f"v_rcp_f32 v{X+14}, v{lsum}")
    A("s_nop 0")
    for i in range(12): A(f"v_mul_f32 v{X+i}, v{Oa+i}, v{X+14}")
    P=X+16
    for i in range(6): A(f"v_cvt_pk_bf16_f32 v{P+i}, v{X+2*i}, v{X+2*i+1}")
    A(f"buffer_store_dwordx4 {v(P,4)}, v{vq}, {s(sO,4)}, s4 offen")
    A("s_mov_b32 exec_hi, 0")
    A(f"buffer_store_dwordx2 {v(P+4,2)}, v{vq}, {s(sO,4)}, s4 offen offset:32")
    A("s_mov_b64 exec, -1")
    if cfg.stamps:
        A("s_waitcnt vmcnt(0)")
        stamp()
        A("s_waitcnt lgkmcnt(0)")
        A(f"s_lshl_b32 s5, s2, 3")
        A(f"s_add_u32 s5, s5, s{sw}")
        A(f"s_lshl_b32 s5, s5, 6")
        A(f"v_mov_b32 v{t0}, s5")
        A("s_mov_b64 exec, 1")
        A("s_sub_u32 s62, s62, s60")
        A(f"v_mov_b32 v{t1}, s62")
        A(f"global_store_dword v{t0}, v{t1}, s[36:37] offset:60")
        for i in range(nst[0]):
            A(f"v_mov_b32 v{t1}, s{sT+2*i}")
            A(f"global_store_dword v{t0}, v{t1}, s[36:37] offset:{4*i}")
    A("L_end:")
    A("s_endpgm")
    hdr=f"""; fused attention forward, B=1 H=32 S=2048 Dh=20, bf16  (generated by gen/genY.py)
; @launch grid=(256,1,1) block=(512,1,1) lds=163840
.amdgcn_target "amdgcn-amd-amdhsa--gfx950"
.text
.globl {NAME}_kernel
.p2align 8
.type {NAME}_kernel,@function
{NAME}_kernel:
"""
    nv=(NV+7)//8*8
    ftr=f""".section .rodata,"a"
.p2align 6
.amdhsa_kernel {NAME}_kernel
  .amdhsa_next_free_vgpr {nv}
  .amdhsa_next_free_sgpr 64
  .amdhsa_accum_offset {nv}
  .amdhsa_group_segment_fixed_size 0
  .amdhsa_kernarg_size 48
  .amdhsa_user_sgpr_count 2
  .amdhsa_user_sgpr_kernarg_segment_ptr 1
  .amdhsa_system_sgpr_workgroup_id_x 1
.end_amdhsa_kernel
"""
    body="\n".join((x if x.endswith(":") else "    "+x) for x in L)
    return hdr+body+"\n"+ftr

if __name__=="__main__":
    cfg=Cfg()
    out=sys.argv[1]
    for a in sys.argv[2:]:
        k,val=a.split("=",1)
        setattr(cfg,k,eval(val))
    open(out,"w").write(gen(cfg))
```

```python
import sys, math, struct
NAME="standalone__fused_io_aware_attn__prompt"
def f32bits(x): return struct.unpack("<I",struct.pack("<f",x))[0]
def v(b,n=1): return f"v[{b}:{b+n-1}]" if n>1 else f"v{b}"
def s(b,n=1): return f"s[{b}:{b+n-1}]" if n>1 else f"s{b}"

class Cfg:
    barriers=[0,2,6,14]
    prio={}
    prio0=None
    stamps=False
    fallback=True
    G=3
    padk=None

def gen(cfg):
    L=[]
    A=L.append
    HEADB=81920
    KBASE=4096; KHALF=38912; VBASE=81920; VHALF=40960
    G=cfg.G
    NAV=(32+G-1)//G
    idx=1; ak=2; t0=3; t1=4; t2=5; vlane16=6; vq=7
    Qa16=8; Qb16=12; Q8=16
    K16=[20,28]; K8=[24,32]
    V=[36,44]
    Oa=52; Ob=68
    S=[84,116]
    av=148
    NV=av+NAV
    sQ=8; sK=12; sD=16; sO=20
    sw=24; sj=25; skh=26; sm0=27; ssrc=28; sisV=29; stmp=30; stmp2=31
    sT=40
    nst=[0]
    def stamp():
        if cfg.stamps or cfg.padk is not None:
            A(f"s_memrealtime {s(sT+2*nst[0],2)}")
            nst[0]+=1
    def exps(base, lo, n=4):
        for i in range(lo,lo+n): A(f"v_exp_f32 v{base+i}, v{base+i}")
    def smf(O,Aa,B): A(f"v_smfmac_f32_32x32x32_bf16 {v(O,16)}, {v(Aa,4)}, {v(B,8)}, v{idx}")
    def mf16(D,Aa,B): A(f"v_mfma_f32_32x32x16_bf16 {v(D,16)}, {v(Aa,4)}, {v(B,4)}, {v(D,16)}")
    def mf2b(D,Aa,B): A(f"v_mfma_f32_32x32x4_2b_bf16 {v(D,32)}, {v(Aa,2)}, {v(B,2)}, 0 cbsz:1 abid:1")
    def rdV(t,dst):
        for j,o in enumerate([0,160,640,800]):
            A(f"ds_read_b64_tr_b16 {v(dst+2*j,2)}, v{av+t//G} offset:{(t%G)*1280+o}")
    def rdK(t,p):
        A(f"ds_read_b64 {v(K16[p],2)}, v{ak} offset:{1280*t}")
        A(f"ds_read_b64 {v(K16[p]+2,2)}, v{ak} offset:{1280*t+8}")
        A(f"ds_read_b64 {v(K8[p],2)}, v{ak} offset:{1280*t+16}")

    stamp()
    A("s_cmp_ge_u32 s2, 256")
    A("s_cbranch_scc1 L_end")
    A("s_load_dwordx4 s[8:11], s[0:1], 0      ; q, k")
    A("s_load_dwordx4 s[16:19], s[0:1], 16    ; v, out")
    if cfg.stamps: A("s_load_dwordx2 s[36:37], s[0:1], 40    ; ws")
    A(f"v_lshrrev_b32 v{t0}, 6, v0")
    A("v_and_b32 v0, 63, v0                   ; lane")
    A(f"v_readfirstlane_b32 s{sw}, v{t0}")
    A("s_and_b32 s3, s2, 7")
    A("s_lshr_b32 s4, s2, 6")
    A("s_lshl_b32 s4, s4, 3")
    A("s_add_u32 s3, s3, s4                   ; head")
    A(f"s_mul_i32 s3, s3, {HEADB}")
    A("s_bfe_u32 s4, s2, 0x30003")
    A(f"s_and_b32 s{sj}, s{sw}, 3")
    A(f"s_lshr_b32 s{skh}, s{sw}, 2")
    A("s_lshl_b32 s4, s4, 2")
    A(f"s_add_u32 s4, s4, s{sj}")
    A("s_mul_i32 s4, s4, 2560")
    A(f"v_and_b32 v{t0}, 31, v0")
    A(f"v_lshrrev_b32 v{t1}, 5, v0            ; h")
    A(f"v_mul_u32_u24 v{vq}, 40, v{t0}")
    A(f"v_lshl_add_u32 v{vq}, v{t1}, 4, v{vq}  ; row*40 + 16h")
    A(f"v_mul_u32_u24 v{t2}, 40, v0           ; lane*40")
    A(f"v_lshlrev_b32 v{vlane16}, 4, v0")
    A(f"s_and_b32 s{sisV}, s{sw}, 1")
    A(f"s_bfe_u32 s5, s{sw}, 0x10001")
    A(f"s_lshl_b32 s6, s{skh}, 10             ; parity*1024")
    A(f"s_mul_i32 s{ssrc}, s5, {VHALF}")
    A(f"s_add_u32 s{ssrc}, s{ssrc}, s6")
    A(f"s_add_u32 s{sm0}, s{ssrc}, {VBASE}")
    A(f"s_mul_i32 s7, s5, {KHALF}")
    A("s_add_u32 s7, s7, s6")
    A(f"s_add_u32 s7, s7, {KBASE}")
    A(f"s_add_u32 s5, s{ssrc}, 2048            ; K: src")
    A(f"s_cmp_eq_u32 s{sisV}, 1")
    A(f"s_cselect_b32 s{sm0}, s{sm0}, s7")
    A(f"s_cselect_b32 s{ssrc}, s{ssrc}, s5")
    A(f"s_mul_i32 s{stmp}, s{skh}, {VHALF}")
    A("s_waitcnt lgkmcnt(0)")
    stamp()
    A("s_add_u32 s12, s10, s3")
    A("s_addc_u32 s13, s11, 0")
    A("s_add_u32 s8, s8, s3")
    A("s_addc_u32 s9, s9, 0")
    A("s_add_u32 s20, s18, s3")
    A("s_addc_u32 s21, s19, 0")
    A("s_add_u32 s32, s16, s3")
    A("s_addc_u32 s33, s17, 0")
    A(f"s_cmp_eq_u32 s{sisV}, 1")
    A("s_cselect_b32 s16, s32, s12")
    A("s_cselect_b32 s17, s33, s13")
    for b in (sQ,sK,sD,sO):
        A(f"s_mov_b32 s{b+2}, {HEADB}")
        A(f"s_mov_b32 s{b+3}, 0x20000")
    ndirect=7
    def dma(i):
        if i%2==0:
            A(f"s_mov_b32 m0, s{sm0}")
            A("s_nop 0")
        A(f"buffer_load_dwordx4 v{vlane16}, {s(sD,4)}, s{ssrc} offen offset:{2048*(i%2)} lds")
        if i%2==1:
            A(f"s_add_u32 s{sm0}, s{sm0}, 4096")
            A(f"s_add_u32 s{ssrc}, s{ssrc}, 4096")
    dma(0)
    A(f"buffer_load_dwordx2 {v(K8[0],2)}, v{vq}, {s(sK,4)}, s{stmp} offen offset:16")
    A(f"buffer_load_dwordx2 {v(Q8,2)}, v{t2}, {s(sQ,4)}, s4 offen offset:32")
    A(f"buffer_load_dwordx4 {v(K16[0],4)}, v{vq}, {s(sK,4)}, s{stmp} offen")
    A(f"buffer_load_dwordx4 {v(Qa16,4)}, v{vq}, {s(sQ,4)}, s4 offen")
    A(f"buffer_load_dwordx4 {v(Qb16,4)}, v{vq}, {s(sQ,4)}, s4 offen offset:1280")
    A(f"buffer_load_dwordx2 {v(K8[1],2)}, v{vq}, {s(sK,4)}, s{stmp} offen offset:{1280+16}")
    A(f"buffer_load_dwordx4 {v(K16[1],4)}, v{vq}, {s(sK,4)}, s{stmp} offen offset:1280")
    for i in range(1,19): dma(i)
    A(f"s_cmp_eq_u32 s{sisV}, 0")
    A("s_cbranch_scc1 L_nolast")
    dma(19)
    A("L_nolast:")
    stamp()
    A(f"v_mov_b32 v{idx}, 0xdddddddd")
    A(f"s_lshl_b32 s5, s{sw}, 9")
    A(f"v_lshl_add_u32 v{S[0]}, v0, 3, s5")
    A(f"v_mov_b32 v{S[0]+2}, 0x3f80")
    A(f"v_mov_b32 v{S[0]+3}, 0")
    A(f"ds_write_b64 v{S[0]}, {v(S[0]+2,2)}")
    A(f"s_mul_i32 s5, s{skh}, {KHALF}")
    A(f"s_add_u32 s5, s5, {KBASE-2048}")
    A(f"v_add_u32 v{ak}, s5, v{vq}")
    A(f"v_bfe_u32 v{t0}, v0, 2, 2             ; r")
    A(f"v_lshl_add_u32 v{t0}, v{t1}, 3, v{t0}")
    A(f"v_mul_u32_u24 v{t0}, 40, v{t0}")
    A(f"v_and_b32 v{t2}, 1, v0")
    A(f"v_lshl_add_u32 v{t0}, v{t2}, 4, v{t0}  ; + 16*(c&1)")
    A(f"v_bfe_u32 v{t2}, v0, 1, 1")
    A(f"v_lshl_add_u32 v{t0}, v{t2}, 3, v{t0}  ; + 8*(c>>1)")
    A(f"v_bfe_u32 v{t2}, v0, 4, 1")
    A(f"v_lshl_add_u32 v{t0}, v{t2}, 5, v{t0}  ; + 32*g")
    A(f"s_add_u32 s5, s{stmp}, {VBASE}")
    A(f"v_add_u32 v{t0}, s5, v{t0}")
    A(f"v_and_b32 v{t2}, 19, v0               ; g*16 + c")
    A(f"v_cmp_lt_u32 vcc, 16, v{t2}")
    A(f"v_cmp_eq_u32 s[6:7], 17, v{t2}")
    A(f"v_mov_b32 v{S[0]+4}, 0x40000")
    A(f"v_mov_b32 v{S[0]+5}, 224")
    A(f"v_cndmask_b32 v{S[0]+4}, v{S[0]+4}, v{S[0]+5}, s[6:7]")
    A(f"v_mov_b32 v{S[0]+5}, {G*1280}")
    A(f"v_cndmask_b32 v{av}, v{t0}, v{S[0]+4}, vcc")
    A(f"v_cndmask_b32 v{S[0]+5}, v{S[0]+5}, 0, vcc")
    for i in range(1,NAV): A(f"v_add_u32 v{av+i}, v{av+i-1}, v{S[0]+5}")
    for i in range(32): A(f"v_mov_b32 v{Oa+i}, 0")
    c=math.log2(math.e)/math.sqrt(20.0)
    A(f"s_mov_b32 s5, {f32bits(c):#x}          ; log2(e)/sqrt(20)")
    def ndma_needed(tK,tV):
        tK=min(tK,31); tV=min(tV,31)
        cV=(1280*(tV+1)-1)//1024; nV=cV//2+1
        cK=(1280*(tK+1)-1)//1024; nK=(cK-2)//2+1 if cK>=2 else 0
        return min(20-nV, 19-nK)
    A("s_waitcnt vmcnt(18)")
    stamp()
    for r in [Q8,Q8+1]+list(range(Qa16,Qa16+8)):
        A(f"v_lshlrev_b32 v{t0}, 16, v{r}")
        A(f"v_and_b32 v{t2}, 0xffff0000, v{r}")
        A(f"v_mul_f32 v{t0}, s5, v{t0}")
        A(f"v_mul_f32 v{t2}, s5, v{t2}")
        A(f"v_cvt_pk_bf16_f32 v{r}, v{t0}, v{t2}")
        if r==Q8+1:
            A("s_nop 1")
            mf2b(S[0],K8[0],Q8)
    A("s_nop 1")
    mf16(S[0],K16[0],Qa16)
    bars=sorted(cfg.barriers)
    def barrier(t):
        nxt=[b for b in bars if b>t]
        last=(nxt[0]-1) if nxt else 31
        A(f"s_waitcnt vmcnt({ndma_needed(last+2,last+1)}) lgkmcnt(0)")
        A("s_barrier")
    barrier(0)
    stamp()
    if cfg.stamps: A("s_memtime s[60:61]")
    rdV(0,V[0])
    A("s_nop 4")
    if cfg.prio0 is not None: A(f"s_setprio {cfg.prio0}")
    for t in range(32):
        p=t&1;q=p^1
        Sa=S[p];Sb=Sa+16;Na=S[q];Nb=Na+16
        if t in cfg.prio: A(f"s_setprio {cfg.prio[t]}")
        mf16(Sb,K16[p],Qb16); exps(Sa,0)
        if t>0: smf(Ob,V[q]+4,Nb+8)
        exps(Sa,4)
        if t in bars and t>0: barrier(t)
        else: A("s_waitcnt lgkmcnt(0)")
        if t+2<32: rdK(t+2,p)
        if t+1<32: rdV(t+1,V[q])
        if t+1<32: mf2b(Na,K8[q],Q8)
        exps(Sa,8,8)
        smf(Oa,V[p],Sa); exps(Sb,0)
        smf(Oa,V[p]+4,Sa+8); exps(Sb,4)
        if t+1<32: mf16(Na,K16[q],Qa16)
        exps(Sb,8)
        smf(Ob,V[p],Sb); exps(Sb,12)
    A("s_nop 1")
    smf(Ob,V[1]+4,S[1]+16+8)
    stamp()
    if cfg.stamps: A("s_memtime s[62:63]")
    A(f"s_mul_i32 s5, s{sw}, 3072")
    A(f"s_add_u32 s5, s5, {VBASE}")
    assert max(bars)>=0
    A(f"s_xor_b32 s6, s{sw}, 4")
    A(f"s_mul_i32 s6, s6, 3072")
    A(f"s_add_u32 s6, s6, {VBASE}")
    A(f"v_add_u32 v{t0}, s5, v{vlane16}")
    A(f"v_add_u32 v{t1}, s6, v{vlane16}")
    A("s_barrier")
    A(f"s_cmp_eq_u32 s{skh}, 0")
    A("s_cbranch_scc1 L_kh0")
    for i in range(3): A(f"ds_write_b128 v{t0}, {v(Oa+4*i,4)} offset:{1024*i}")
    A("s_nop 7")
    for i in range(12): A(f"v_mov_b32 v{Oa+i}, v{Ob+i}")
    A("s_add_u32 s4, s4, 1280")
    A("s_branch L_join")
    A("L_kh0:")
    A("s_nop 7")
    for i in range(3): A(f"ds_write_b128 v{t0}, {v(Ob+4*i,4)} offset:{1024*i}")
    A("L_join:")
    A("s_waitcnt lgkmcnt(0)")
    A("s_barrier")
    X=S[0]
    for i in range(3): A(f"ds_read_b128 {v(X+4*i,4)}, v{t1} offset:{1024*i}")
    A("s_waitcnt lgkmcnt(0)")
    for i in range(12): A(f"v_add_f32 v{Oa+i}, v{Oa+i}, v{X+i}")
    lsum=X+12
    A(f"v_mov_b32 v{X+13}, v{Oa+8}")
    A(f"v_mov_b32 v{lsum}, v{Oa+8}")
    A("s_nop 1")
    A(f"v_permlane32_swap_b32 v{X+13}, v{lsum}")
    A("s_nop 1")
    A(f"v_rcp_f32 v{X+14}, v{lsum}")
    A("s_nop 0")
    for i in range(12): A(f"v_mul_f32 v{X+i}, v{Oa+i}, v{X+14}")
    P=X+16
    for i in range(6): A(f"v_cvt_pk_bf16_f32 v{P+i}, v{X+2*i}, v{X+2*i+1}")
    A(f"buffer_store_dwordx4 {v(P,4)}, v{vq}, {s(sO,4)}, s4 offen")
    A("s_mov_b32 exec_hi, 0")
    A(f"buffer_store_dwordx2 {v(P+4,2)}, v{vq}, {s(sO,4)}, s4 offen offset:32")
    A("s_mov_b64 exec, -1")
    if cfg.stamps:
        A("s_waitcnt vmcnt(0)")
        stamp()
        A("s_waitcnt lgkmcnt(0)")
        A(f"s_lshl_b32 s5, s2, 3")
        A(f"s_add_u32 s5, s5, s{sw}")
        A(f"s_lshl_b32 s5, s5, 6")
        A(f"v_mov_b32 v{t0}, s5")
        A("s_mov_b64 exec, 1")
        A("s_sub_u32 s62, s62, s60")
        A(f"v_mov_b32 v{t1}, s62")
        A(f"global_store_dword v{t0}, v{t1}, s[36:37] offset:60")
        for i in range(nst[0]):
            A(f"v_mov_b32 v{t1}, s{sT+2*i}")
            A(f"global_store_dword v{t0}, v{t1}, s[36:37] offset:{4*i}")
    if cfg.padk is not None:
        A("s_waitcnt vmcnt(0)")
        stamp()
        A("s_waitcnt lgkmcnt(0)")
        A(f"s_add_u32 s5, s{sT+2*cfg.padk}, 4000")
        A("L_spin:")
        A("s_memrealtime s[6:7]")
        A("s_waitcnt lgkmcnt(0)")
        A("s_sub_u32 s6, s6, s5")
        A("s_cmp_lt_i32 s6, 0")
        A("s_cbranch_scc1 L_spin")
    A("L_end:")
    A("s_endpgm")
    hdr=f"""; fused attention forward, B=1 H=32 S=2048 Dh=20, bf16  (generated by gen/genY.py)
; @launch grid=(256,1,1) block=(512,1,1) lds=163840
.amdgcn_target "amdgcn-amd-amdhsa--gfx950"
.text
.globl {NAME}_kernel
.p2align 8
.type {NAME}_kernel,@function
{NAME}_kernel:
"""
    nv=(NV+7)//8*8
    ftr=f""".section .rodata,"a"
.p2align 6
.amdhsa_kernel {NAME}_kernel
  .amdhsa_next_free_vgpr {nv}
  .amdhsa_next_free_sgpr 64
  .amdhsa_accum_offset {nv}
  .amdhsa_group_segment_fixed_size 0
  .amdhsa_kernarg_size 48
  .amdhsa_user_sgpr_count 2
  .amdhsa_user_sgpr_kernarg_segment_ptr 1
  .amdhsa_system_sgpr_workgroup_id_x 1
.end_amdhsa_kernel
"""
    body="\n".join((x if x.endswith(":") else "    "+x) for x in L)
    return hdr+body+"\n"+ftr

if __name__=="__main__":
    cfg=Cfg()
    out=sys.argv[1]
    for a in sys.argv[2:]:
        k,val=a.split("=",1)
        setattr(cfg,k,eval(val))
    open(out,"w").write(gen(cfg))
```

```python
import sys, math, struct
NAME="standalone__fused_io_aware_attn__prompt"
def f32bits(x): return struct.unpack("<I",struct.pack("<f",x))[0]
def v(b,n=1): return f"v[{b}:{b+n-1}]" if n>1 else f"v{b}"
def s(b,n=1): return f"s[{b}:{b+n-1}]" if n>1 else f"s{b}"

class Cfg:
    e0=4
    e1=28
    m1=7
    abar0=4
    abar=10; bbar=2
    prio={24:2,30:1,31:0}
    prio0=3
    priodma=None
    stamps=False
    G=3
    padk=None
    store_mod=""
    codepf=True

def gen(cfg):
    L=[]
    A=L.append
    HEADB=81920
    VBASE=4096; VHALF=40960; KBASE=VBASE+2*VHALF; KHALF=38912
    QST=VBASE+VHALF+28*1024
    G=cfg.G
    NAV=(32+G-1)//G
    idx=1; ak=2; t0=3; t1=4; t2=5; vlane16=6; vq=7
    Qa16=8; Qb16=12; Q8=16; t3=18; t4=19
    K16=[20,28]; K8=[24,32]
    V=[36,44]
    Oa=52; Ob=68
    S=[84,116]
    av=148
    NV=av+NAV
    sQ=8; sK=12; sD=16; sO=20
    sw=24; sj=25; skh=26; sm0=27; ssrc=28; sisV=29; sqb=31; send=34
    sT=40
    def stamp(k):
        if cfg.stamps or cfg.padk is not None:
            A(f"s_memrealtime {s(sT+2*k,2)}")
    def exps(base, lo, n=4):
        for i in range(lo,lo+n): A(f"v_exp_f32 v{base+i}, v{base+i}")
    def smf(O,Aa,B): A(f"v_smfmac_f32_32x32x32_bf16 {v(O,16)}, {v(Aa,4)}, {v(B,8)}, v{idx}")
    def mf16(D,Aa,B): A(f"v_mfma_f32_32x32x16_bf16 {v(D,16)}, {v(Aa,4)}, {v(B,4)}, {v(D,16)}")
    def mf2b(D,Aa,B): A(f"v_mfma_f32_32x32x4_2b_bf16 {v(D,32)}, {v(Aa,2)}, {v(B,2)}, 0 cbsz:1 abid:1")
    def rdV(t,dst):
        for j,o in enumerate([0,160,640,800]):
            A(f"ds_read_b64_tr_b16 {v(dst+2*j,2)}, v{av+t//G} offset:{(t%G)*1280+o}")
    def rdK(t,p):
        A(f"ds_read_b64 {v(K16[p],2)}, v{ak} offset:{1280*t}")
        A(f"ds_read_b64 {v(K16[p]+2,2)}, v{ak} offset:{1280*t+8}")
        A(f"ds_read_b64 {v(K8[p],2)}, v{ak} offset:{1280*t+16}")
    assert (cfg.abar0+2)*1280 <= 8*1024
    assert (cfg.abar+2)*1280 <= (8+cfg.m1)*1024
    assert (cfg.bbar+2)*1280 <= (2+cfg.m1)*1024 and (cfg.bbar+1)*1280 <= cfg.m1*1024
    assert (cfg.abar+2)*1280-2048 >= 12288
    assert cfg.e1<=28 and cfg.e0%4==0 and cfg.e1%4==0 and cfg.e0<=cfg.e1 and cfg.m1<=cfg.e1
    qa=S[0]+4; qb=S[0]+5; q8=S[0]+6
    c=math.log2(math.e)/math.sqrt(20.0)
    def setup(kh):
        A(f"s_mov_b32 s22, {HEADB}")
        A("s_mov_b32 s23, 0x20000")
        A(f"s_and_b32 s{sj}, s{sw}, 3")
        A(f"v_and_b32 v{t0}, 31, v0")
        A(f"v_lshrrev_b32 v{t1}, 5, v0            ; h")
        A(f"v_mul_u32_u24 v{t2}, 40, v{t0}")
        A(f"v_lshl_add_u32 v{vq}, v{t1}, 4, v{t2}  ; row*40 + 16h")
        A(f"s_mul_i32 s5, s{sj}, 2560")
        A(f"s_add_u32 s{sqb}, s4, s5")
        if kh: A(f"s_addk_i32 s{sqb}, 1280")
        A(f"s_add_u32 s7, s5, {QST+1280*kh}")
        A(f"v_add_u32 v{qb}, s7, v{vq}")
        A(f"s_add_u32 s7, s5, {QST+1280*(1-kh)}")
        A(f"v_add_u32 v{qa}, s7, v{vq}")
        if kh: A(f"v_mul_u32_u24 v{t3}, 0x500, v{t1}")
        else:
            A(f"v_xor_b32 v{t3}, 1, v{t1}")
            A(f"v_mul_u32_u24 v{t3}, 0x500, v{t3}")
        A(f"s_add_u32 s5, s5, {QST+32}")
        A(f"v_add3_u32 v{q8}, v{t3}, v{t2}, s5")
        A(f"v_add_u32 v{ak}, {KBASE-2048+kh*KHALF}, v{vq}")
        A(f"v_bfe_u32 v{t0}, v0, 2, 2             ; r")
        A(f"v_lshl_add_u32 v{t0}, v{t1}, 3, v{t0}")
        A(f"v_mul_u32_u24 v{t0}, 40, v{t0}")
        A(f"v_and_b32 v{t2}, 1, v0")
        A(f"v_lshl_add_u32 v{t0}, v{t2}, 4, v{t0}  ; + 16*(c&1)")
        A(f"v_bfe_u32 v{t2}, v0, 1, 1")
        A(f"v_lshl_add_u32 v{t0}, v{t2}, 3, v{t0}  ; + 8*(c>>1)")
        A(f"v_bfe_u32 v{t2}, v0, 4, 1")
        A(f"v_lshl_add_u32 v{t0}, v{t2}, 5, v{t0}  ; + 32*g")
        A(f"v_add_u32 v{t0}, {VBASE+kh*VHALF}, v{t0}")
        A(f"v_and_b32 v{t2}, 19, v0               ; g*16 + c")
        A(f"v_cmp_lt_u32 vcc, 16, v{t2}")
        A(f"v_cmp_eq_u32 s[6:7], 17, v{t2}")
        A(f"v_mov_b32 v{S[1]+4}, 0x40000")
        A(f"v_mov_b32 v{S[1]+5}, 224")
        A(f"v_cndmask_b32 v{S[1]+4}, v{S[1]+4}, v{S[1]+5}, s[6:7]")
        A(f"v_mov_b32 v{S[1]+5}, {G*1280}")
        A(f"v_cndmask_b32 v{av}, v{t0}, v{S[1]+4}, vcc")
        A(f"v_cndmask_b32 v{S[1]+5}, v{S[1]+5}, 0, vcc")
        A(f"v_mov_b32 v{idx}, 0xdddddddd")
        for i in range(1,NAV): A(f"v_add_u32 v{av+i}, v{av+i-1}, v{S[1]+5}")
        for i in range(0,32,2): A(f"v_mov_b64 {v(Oa+i,2)}, 0")
        A(f"s_mov_b32 s6, {f32bits(c):#x}          ; log2(e)/sqrt(20)")
        A(f"s_mov_b32 s7, s6")
        A(f"s_mul_i32 s5, s{sj}, 3072")
        A(f"s_add_u32 s38, s5, {KBASE if kh else VBASE}")
        A(f"s_add_u32 s39, s5, {VBASE if kh else KBASE}")
    def rdQ():
        A(f"ds_read_b64 {v(Q8,2)}, v{q8}")
        A(f"ds_read_b64 {v(Qa16,2)}, v{qa}")
        A(f"ds_read_b64 {v(Qa16+2,2)}, v{qa} offset:8")
        A(f"ds_read_b64 {v(Qb16,2)}, v{qb}")
        A(f"ds_read_b64 {v(Qb16+2,2)}, v{qb} offset:8")
    def scale(r):
        A(f"v_lshlrev_b32 v{t3}, 16, v{r}")
        A(f"v_and_b32 v{t4}, 0xffff0000, v{r}")
        A(f"v_pk_mul_f32 {v(t3,2)}, {v(t3,2)}, s[6:7]")
        A(f"v_cvt_pk_bf16_f32 v{r}, v{t3}, v{t4}")
    def dma4(n=4):
        A(f"s_mov_b32 m0, s{sm0}")
        A(f"s_addk_i32 s{sm0}, {1024*n}")
        for i in range(n):
            A(f"buffer_load_dwordx4 v{vlane16}, {s(sD,4)}, s{ssrc} offen offset:{1024*i} lds")
        A(f"s_addk_i32 s{ssrc}, {1024*n}")

    stamp(0)
    A("s_load_dwordx4 s[8:11], s[0:1], 0      ; q, k")
    A("s_load_dwordx4 s[16:19], s[0:1], 16    ; v, out")
    if cfg.stamps: A("s_load_dwordx2 s[36:37], s[0:1], 40    ; ws")
    A("s_cmp_ge_u32 s2, 256")
    A("s_cbranch_scc1 L_end")
    npf=0
    if cfg.codepf:
        A("s_getpc_b64 s[6:7]")
        A(f"v_mul_u32_u24 v{t1}, 20, v0")
        A(f"global_load_dword v{S[1]+8}, v{t1}, s[6:7]")
        npf=1
    A(f"v_lshrrev_b32 v{t0}, 6, v0")
    A("v_and_b32 v0, 63, v0                   ; lane")
    A(f"v_readfirstlane_b32 s{sw}, v{t0}")
    A(f"v_lshlrev_b32 v{vlane16}, 4, v0")
    A("s_and_b32 s3, s2, 7")
    A("s_lshr_b32 s4, s2, 6")
    A("s_lshl_b32 s4, s4, 3")
    A("s_add_u32 s3, s3, s4                   ; head")
    A(f"s_mul_i32 s3, s3, {HEADB}")
    A("s_bfe_u32 s4, s2, 0x30003")
    A("s_mul_i32 s4, s4, 10240")
    A(f"s_mul_i32 s5, s{sw}, 1280")
    A("s_add_u32 s35, s4, s5")
    A(f"s_add_u32 s5, s5, {QST}")
    A("s_mov_b32 m0, s5")
    A(f"s_and_b32 s{sisV}, s{sw}, 1")
    A(f"s_cselect_b32 s30, 0, {KBASE-2048-VBASE}")
    A(f"s_addk_i32 s30, {VBASE}")
    A(f"s_lshr_b32 s5, s{sw}, 1")
    A(f"s_lshl_b32 s{ssrc}, s5, 11")
    A(f"s_add_u32 s{sm0}, s30, s{ssrc}")
    A(f"s_mov_b32 s14, {HEADB}")
    A("s_mov_b32 s15, 0x20000")
    A(f"s_lshr_b32 s{skh}, s{sw}, 2")
    A("s_waitcnt lgkmcnt(0)")
    stamp(1)
    A("s_add_u32 s12, s10, s3")
    A("s_addc_u32 s13, s11, 0")
    A("s_add_u32 s8, s8, s3")
    A("s_addc_u32 s9, s9, 0")
    A(f"s_mov_b32 s10, {HEADB}")
    A("s_mov_b32 s11, 0x20000")
    A(f"buffer_load_dwordx4 v{vlane16}, {s(sQ,4)}, s35 offen lds")
    A("s_mov_b64 exec, 0xffff")
    A(f"buffer_load_dwordx4 v{vlane16}, {s(sQ,4)}, s35 offen offset:1024 lds")
    A("s_mov_b64 exec, -1")
    A("s_add_u32 s20, s18, s3")
    A("s_addc_u32 s21, s19, 0")
    A("s_add_u32 s16, s16, s3")
    A("s_addc_u32 s17, s17, 0")
    A(f"s_cmp_eq_u32 s{sisV}, 1")
    A("s_cselect_b32 s16, s16, s12")
    A("s_cselect_b32 s17, s17, s13")
    A(f"s_mov_b32 m0, s{sm0}")
    A(f"s_mov_b32 s18, {HEADB}")
    A("s_mov_b32 s19, 0x20000")
    A(f"buffer_load_dwordx4 v{vlane16}, {s(sD,4)}, s{ssrc} offen lds")
    A(f"buffer_load_dwordx4 v{vlane16}, {s(sD,4)}, s{ssrc} offen offset:1024 lds")
    A(f"s_cmp_eq_u32 s{skh}, 0")
    A("s_cbranch_scc1 L_awave")
    if cfg.priodma is not None: A(f"s_setprio {cfg.priodma}")
    A(f"s_cmp_eq_u32 s{sisV}, 1")
    A("s_cselect_b32 s7, 0, 2048")
    A(f"s_add_u32 s6, s7, {VHALF}")
    A(f"s_cmp_ge_u32 s{sw}, 6")
    A(f"s_cselect_b32 s{ssrc}, s6, 0x2000")
    A("s_cselect_b32 s7, s7, 0")
    A(f"s_cselect_b32 s{send}, {VHALF}, 0")
    A(f"s_add_u32 s{send}, s{send}, {VHALF}")
    A(f"s_add_u32 s{sm0}, s30, s{ssrc}")
    A(f"s_sub_u32 s{sm0}, s{sm0}, s7")
    for i in range(cfg.e0//4): dma4()
    stamp(2)
    A("s_branch L_bwave")
    A("L_awave:")
    stamp(2)
    A(f"s_lshl_b32 s5, s{sw}, 10")
    A(f"v_add_u32 v{S[0]}, s5, v{vlane16}")
    A(f"v_mov_b32 v{S[0]+8}, 0x3f80")
    A(f"v_mov_b32 v{S[0]+9}, 0")
    A(f"v_mov_b32 v{S[0]+10}, 0x3f80")
    A(f"v_mov_b32 v{S[0]+11}, 0")
    A(f"ds_write_b128 v{S[0]}, {v(S[0]+8,4)}")
    setup(0)
    A(f"s_cmp_eq_u32 s{skh}, 1")
    A(f"s_waitcnt vmcnt(0) lgkmcnt(0)")
    A(f"s_setprio {cfg.prio0}")
    A("s_barrier")
    stamp(3)
    A(f"ds_read_b64 {v(K8[0],2)}, v{ak} offset:16")
    rdQ()
    A(f"ds_read_b64 {v(K16[0],2)}, v{ak}")
    A(f"ds_read_b64 {v(K16[0]+2,2)}, v{ak} offset:8")
    rdK(1,1)
    rdV(0,V[0])
    A("s_waitcnt lgkmcnt(13)")
    scale(Q8); scale(Q8+1)
    A("s_waitcnt lgkmcnt(11)")
    A("s_nop 0")
    mf2b(S[0],K8[0],Q8)
    for r in range(Qa16,Qa16+4): scale(r)
    A("s_waitcnt lgkmcnt(7)")
    A("s_nop 0")
    mf16(S[0],K16[0],Qa16)
    for r in range(Qb16,Qb16+4): scale(r)
    A("L_join:")
    stamp(4)
    if cfg.stamps: A("s_memtime s[60:61]")
    A(f"s_setprio {cfg.prio0}")
    A("s_nop 0")
    XW=t0; XR=t1
    A("L_loop:")
    for t in range(32):
        p=t&1;q=p^1
        Sa=S[p];Sb=Sa+16;Na=S[q];Nb=Na+16
        if t in cfg.prio: A(f"s_setprio {cfg.prio[t]}")
        mf16(Sb,K16[p],Qb16); exps(Sa,0)
        if t>0: smf(Ob,V[q]+4,Nb+8)
        exps(Sa,4)
        A("s_waitcnt lgkmcnt(0)")
        if t==cfg.abar0:
            A(f"s_cbranch_scc1 L_na0")
            stamp(9)
            A("s_barrier                              ; b0'")
            stamp(10)
            A(f"L_na0:")
        if t==cfg.abar:
            A(f"s_cbranch_scc1 L_na")
            stamp(7)
            A("s_barrier                              ; b1")
            stamp(8)
            A(f"L_na:")
        if t==cfg.bbar:
            A(f"s_cbranch_scc0 L_nb")
            A("s_waitcnt vmcnt(0)")
            stamp(7)
            A("s_barrier                              ; b1")
            stamp(8)
            A(f"L_nb:")
        if t+2<32: rdK(t+2,p)
        if t+1<32: rdV(t+1,V[q])
        if t+1<32: mf2b(Na,K8[q],Q8)
        exps(Sa,8,8)
        smf(Oa,V[p],Sa); exps(Sb,0)
        smf(Oa,V[p]+4,Sa+8); exps(Sb,4)
        if t+1<32: mf16(Na,K16[q],Qa16)
        exps(Sb,8)
        if t==31:
            A(f"v_add_u32 v{XW}, s38, v{vlane16}")
            A("s_nop 2")
            for i in range(3): A(f"ds_write_b128 v{XW}, {v(Oa+4*i,4)} offset:{1024*i}")
        smf(Ob,V[p],Sb); exps(Sb,12)
    A("s_nop 1")
    smf(Ob,V[1]+4,S[1]+16+8)
    A(f"v_add_u32 v{XR}, s39, v{vlane16}")
    stamp(5)
    if cfg.stamps: A("s_memtime s[62:63]")
    A("s_waitcnt lgkmcnt(0)")
    A("s_barrier")
    X=S[0]
    for i in (2,0,1): A(f"ds_read_b128 {v(X+4*i,4)}, v{XR} offset:{1024*i}")
    A("s_nop 5")
    A("s_waitcnt lgkmcnt(2)")
    lsum=X+12
    A(f"v_add_f32 v{X+13}, v{Ob+8}, v{X+8}")
    A(f"v_add_f32 v{lsum}, v{Ob+8}, v{X+8}")
    for i in (8,10): A(f"v_pk_add_f32 {v(X+i,2)}, {v(Ob+i,2)}, {v(X+i,2)}")
    A(f"v_permlane32_swap_b32 v{X+13}, v{lsum}")
    A("s_waitcnt lgkmcnt(0)")
    A(f"v_pk_add_f32 {v(X,2)}, {v(Ob,2)}, {v(X,2)}")
    A(f"v_rcp_f32 v{X+14}, v{lsum}")
    for i in (2,4,6): A(f"v_pk_add_f32 {v(X+i,2)}, {v(Ob+i,2)}, {v(X+i,2)}")
    P=X+16
    for i in range(0,12,2):
        A(f"v_pk_mul_f32 {v(X+i,2)}, {v(X+i,2)}, {v(X+14,2)} op_sel_hi:[1,0]")
    for i in range(4): A(f"v_cvt_pk_bf16_f32 v{P+i}, v{X+2*i}, v{X+2*i+1}")
    A(f"buffer_store_dwordx4 {v(P,4)}, v{vq}, {s(sO,4)}, s{sqb} offen {cfg.store_mod}")
    for i in range(4,6): A(f"v_cvt_pk_bf16_f32 v{P+i}, v{X+2*i}, v{X+2*i+1}")
    A("s_mov_b32 exec_hi, 0")
    A(f"buffer_store_dwordx2 {v(P+4,2)}, v{vq}, {s(sO,4)}, s{sqb} offen offset:32 {cfg.store_mod}")
    A("s_mov_b64 exec, -1")
    if cfg.stamps:
        A("s_waitcnt vmcnt(0)")
        stamp(6)
        A("s_waitcnt lgkmcnt(0)")
        A(f"s_lshl_b32 s5, s2, 3")
        A(f"s_add_u32 s5, s5, s{sw}")
        A(f"s_lshl_b32 s5, s5, 6")
        A(f"v_mov_b32 v{t0}, s5")
        A("s_mov_b64 exec, 1")
        A("s_sub_u32 s66, s66, s64")
        A(f"v_mov_b32 v{t1}, s66")
        A(f"global_store_dword v{t0}, v{t1}, s[36:37] offset:60")
        for i in range(11):
            A(f"v_mov_b32 v{t1}, s{sT+2*i}")
            A(f"global_store_dword v{t0}, v{t1}, s[36:37] offset:{4*i}")
    if cfg.padk is not None:
        A("s_waitcnt vmcnt(0)")
        stamp(6)
        A("s_waitcnt lgkmcnt(0)")
        A(f"s_add_u32 s5, s{sT+2*cfg.padk}, 4000")
        A("L_spin:")
        A("s_memrealtime s[6:7]")
        A("s_waitcnt lgkmcnt(0)")
        A("s_sub_u32 s6, s6, s5")
        A("s_cmp_lt_i32 s6, 0")
        A("s_cbranch_scc1 L_spin")
    A("L_end:")
    A("s_endpgm")
    A("L_bwave:")
    setup(1)
    A(f"s_mov_b32 s5, {VHALF}")
    A(f"s_waitcnt vmcnt({cfg.e0})")
    A("s_barrier                              ; b0")
    stamp(3)
    rdQ()
    dma4()
    A(f"buffer_load_dwordx2 {v(K8[0],2)}, v{vq}, {s(sK,4)}, s5 offen offset:16")
    A(f"buffer_load_dwordx4 {v(K16[0],4)}, v{vq}, {s(sK,4)}, s5 offen")
    A(f"buffer_load_dwordx2 {v(K8[1],2)}, v{vq}, {s(sK,4)}, s5 offen offset:{1280+16}")
    A(f"buffer_load_dwordx4 {v(K16[1],4)}, v{vq}, {s(sK,4)}, s5 offen offset:1280")
    A("s_waitcnt lgkmcnt(0)")
    for r in [Q8,Q8+1]+list(range(Qa16,Qa16+8)): scale(r)
    for i in range((cfg.e1-cfg.e0)//4-1): dma4()
    assert cfg.m1<=cfg.e0+4
    A(f"s_waitcnt vmcnt({cfg.e1-cfg.e0-4})")
    mf2b(S[0],K8[0],Q8)
    stamp(9)
    A("s_barrier                              ; b0'")
    stamp(10)
    rdV(0,V[0])
    A("L_dma:")
    dma4(2)
    A(f"s_cmp_lt_u32 s{ssrc}, s{send}")
    A("s_cbranch_scc1 L_dma")
    A("s_nop 7")
    mf16(S[0],K16[0],Qa16)
    A("s_nop 6")
    A(f"s_cmp_eq_u32 s{skh}, 1")
    A("s_branch L_join")
    if cfg.codepf:
        A(".fill 128, 4, 0xbf800000")
    hdr=f"""; fused attention forward, B=1 H=32 S=2048 Dh=20, bf16  (generated by gen/genY4.py)
; @launch grid=(256,1,1) block=(512,1,1) lds=163840
.amdgcn_target "amdgcn-amd-amdhsa--gfx950"
.text
.globl {NAME}_kernel
.p2align 8
.type {NAME}_kernel,@function
{NAME}_kernel:
"""
    nv=(NV+7)//8*8
    ftr=f""".section .rodata,"a"
.p2align 6
.amdhsa_kernel {NAME}_kernel
  .amdhsa_next_free_vgpr {nv}
  .amdhsa_next_free_sgpr 72
  .amdhsa_accum_offset {nv}
  .amdhsa_group_segment_fixed_size 0
  .amdhsa_kernarg_size 48
  .amdhsa_user_sgpr_count 2
  .amdhsa_user_sgpr_kernarg_segment_ptr 1
  .amdhsa_system_sgpr_workgroup_id_x 1
.end_amdhsa_kernel
"""
    body="\n".join((x if x.endswith(":") else "    "+x) for x in L)
    body=body.replace("s_memtime s[60:61]","s_memtime s[64:65]").replace("s_memtime s[62:63]","s_memtime s[66:67]")
    return hdr+body+"\n"+ftr
if __name__=="__main__":
    cfg=Cfg()
    out=sys.argv[1]
    for a in sys.argv[2:]:
        k,val=a.split("=",1)
        setattr(cfg,k,eval(val))
    open(out,"w").write(gen(cfg))
```

```python
import sys, math, struct
NAME="standalone__fused_io_aware_attn__prompt"
def f32bits(x): return struct.unpack("<I",struct.pack("<f",x))[0]
def v(b,n=1): return f"v[{b}:{b+n-1}]" if n>1 else f"v{b}"
def s(b,n=1): return f"s[{b}:{b+n-1}]" if n>1 else f"s{b}"

class Cfg:
    e0=4
    e1=24
    m1=7
    abar0=4
    abar=10; bbar=1
    prio={24:2,30:1,31:0}
    prio0=3
    priodma=None
    stamps=False
    G=3
    padk=None
    store_mod=""
    codepf=True
    coal=True

def gen(cfg):
    L=[]
    A=L.append
    HEADB=81920
    VBASE=4096; VHALF=40960; KBASE=VBASE+2*VHALF; KHALF=38912
    QST=VBASE+VHALF+28*1024
    G=cfg.G
    NAV=(32+G-1)//G
    idx=1; ak=2; t0=3; t1=4; t2=5; vlane16=6; vq=7
    Qa16=8; Qb16=12; Q8=16; t3=18; t4=19
    K16=[20,28]; K8=[24,32]
    V=[36,44]
    Oa=52; Ob=68
    S=[84,116]
    av=148
    NV=av+NAV
    sQ=8; sK=12; sD=16; sO=20
    sw=24; sj=25; skh=26; sm0=27; ssrc=28; sisV=29; sqb=31; send=34
    sT=40
    def stamp(k):
        if cfg.stamps or cfg.padk is not None:
            A(f"s_memrealtime {s(sT+2*k,2)}")
    def exps(base, lo, n=4):
        for i in range(lo,lo+n): A(f"v_exp_f32 v{base+i}, v{base+i}")
    def smf(O,Aa,B): A(f"v_smfmac_f32_32x32x32_bf16 {v(O,16)}, {v(Aa,4)}, {v(B,8)}, v{idx}")
    def mf16(D,Aa,B): A(f"v_mfma_f32_32x32x16_bf16 {v(D,16)}, {v(Aa,4)}, {v(B,4)}, {v(D,16)}")
    def mf2b(D,Aa,B): A(f"v_mfma_f32_32x32x4_2b_bf16 {v(D,32)}, {v(Aa,2)}, {v(B,2)}, 0 cbsz:1 abid:1")
    def rdV(t,dst):
        for j,o in enumerate([0,160,640,800]):
            A(f"ds_read_b64_tr_b16 {v(dst+2*j,2)}, v{av+t//G} offset:{(t%G)*1280+o}")
    def rdK(t,p):
        A(f"ds_read_b64 {v(K16[p],2)}, v{ak} offset:{1280*t}")
        A(f"ds_read_b64 {v(K16[p]+2,2)}, v{ak} offset:{1280*t+8}")
        A(f"ds_read_b64 {v(K8[p],2)}, v{ak} offset:{1280*t+16}")
    assert (cfg.abar0+2)*1280 <= 8*1024
    assert (cfg.abar+2)*1280 <= (8+cfg.m1)*1024
    assert (cfg.bbar+2)*1280 <= (2+cfg.m1)*1024 and (cfg.bbar+1)*1280 <= cfg.m1*1024
    assert (cfg.abar+2)*1280-2048 >= 12288
    assert cfg.e1<=28 and cfg.e0%4==0 and cfg.e1%4==0 and cfg.e0<=cfg.e1 and cfg.m1<=cfg.e1
    qa=S[0]+4; qb=S[0]+5; q8=S[0]+6
    c=math.log2(math.e)/math.sqrt(20.0)
    def setup(kh):
        A(f"s_mov_b32 s22, {HEADB}")
        A("s_mov_b32 s23, 0x20000")
        A(f"s_and_b32 s{sj}, s{sw}, 3")
        A(f"v_and_b32 v{t0}, 31, v0")
        A(f"v_lshrrev_b32 v{t1}, 5, v0            ; h")
        A(f"v_mul_u32_u24 v{t2}, 40, v{t0}")
        A(f"v_lshl_add_u32 v{vq}, v{t1}, 4, v{t2}  ; row*40 + 16h")
        A(f"s_mul_i32 s5, s{sj}, 2560")
        A(f"s_add_u32 s{sqb}, s4, s5")
        if kh: A(f"s_addk_i32 s{sqb}, 1280")
        A(f"s_add_u32 s7, s5, {QST+1280*kh}")
        A(f"v_add_u32 v{qb}, s7, v{vq}")
        A(f"s_add_u32 s7, s5, {QST+1280*(1-kh)}")
        A(f"v_add_u32 v{qa}, s7, v{vq}")
        if kh: A(f"v_mul_u32_u24 v{t3}, 0x500, v{t1}")
        else:
            A(f"v_xor_b32 v{t3}, 1, v{t1}")
            A(f"v_mul_u32_u24 v{t3}, 0x500, v{t3}")
        A(f"s_add_u32 s5, s5, {QST+32}")
        A(f"v_add3_u32 v{q8}, v{t3}, v{t2}, s5")
        A(f"v_add_u32 v{ak}, {KBASE-2048+kh*KHALF}, v{vq}")
        A(f"v_bfe_u32 v{t0}, v0, 2, 2             ; r")
        A(f"v_lshl_add_u32 v{t0}, v{t1}, 3, v{t0}")
        A(f"v_mul_u32_u24 v{t0}, 40, v{t0}")
        A(f"v_and_b32 v{t2}, 1, v0")
        A(f"v_lshl_add_u32 v{t0}, v{t2}, 4, v{t0}  ; + 16*(c&1)")
        A(f"v_bfe_u32 v{t2}, v0, 1, 1")
        A(f"v_lshl_add_u32 v{t0}, v{t2}, 3, v{t0}  ; + 8*(c>>1)")
        A(f"v_bfe_u32 v{t2}, v0, 4, 1")
        A(f"v_lshl_add_u32 v{t0}, v{t2}, 5, v{t0}  ; + 32*g")
        A(f"v_add_u32 v{t0}, {VBASE+kh*VHALF}, v{t0}")
        A(f"v_and_b32 v{t2}, 19, v0               ; g*16 + c")
        A(f"v_cmp_lt_u32 vcc, 16, v{t2}")
        A(f"v_cmp_eq_u32 s[6:7], 17, v{t2}")
        A(f"v_mov_b32 v{S[1]+4}, 0x40000")
        A(f"v_mov_b32 v{S[1]+5}, 224")
        A(f"v_cndmask_b32 v{S[1]+4}, v{S[1]+4}, v{S[1]+5}, s[6:7]")
        A(f"v_mov_b32 v{S[1]+5}, {G*1280}")
        A(f"v_cndmask_b32 v{av}, v{t0}, v{S[1]+4}, vcc")
        A(f"v_cndmask_b32 v{S[1]+5}, v{S[1]+5}, 0, vcc")
        A(f"v_mov_b32 v{idx}, 0xdddddddd")
        for i in range(1,NAV): A(f"v_add_u32 v{av+i}, v{av+i-1}, v{S[1]+5}")
        for i in range(0,32,2): A(f"v_mov_b64 {v(Oa+i,2)}, 0")
        A(f"s_mov_b32 s6, {f32bits(c):#x}          ; log2(e)/sqrt(20)")
        A(f"s_mov_b32 s7, s6")
        A(f"s_mul_i32 s5, s{sj}, 3072")
        A(f"s_add_u32 s38, s5, {KBASE if kh else VBASE}")
        A(f"s_add_u32 s39, s5, {VBASE if kh else KBASE}")
    def rdQ():
        A(f"ds_read_b64 {v(Q8,2)}, v{q8}")
        A(f"ds_read_b64 {v(Qa16,2)}, v{qa}")
        A(f"ds_read_b64 {v(Qa16+2,2)}, v{qa} offset:8")
        A(f"ds_read_b64 {v(Qb16,2)}, v{qb}")
        A(f"ds_read_b64 {v(Qb16+2,2)}, v{qb} offset:8")
    def scale(r):
        A(f"v_lshlrev_b32 v{t3}, 16, v{r}")
        A(f"v_and_b32 v{t4}, 0xffff0000, v{r}")
        A(f"v_pk_mul_f32 {v(t3,2)}, {v(t3,2)}, s[6:7]")
        A(f"v_cvt_pk_bf16_f32 v{r}, v{t3}, v{t4}")
    def dma4(n=4):
        A(f"s_mov_b32 m0, s{sm0}")
        A(f"s_addk_i32 s{sm0}, {1024*n}")
        for i in range(n):
            A(f"buffer_load_dwordx4 v{vlane16}, {s(sD,4)}, s{ssrc} offen offset:{1024*i} lds")
        A(f"s_addk_i32 s{ssrc}, {1024*n}")

    stamp(0)
    A("s_load_dwordx4 s[8:11], s[0:1], 0      ; q, k")
    A("s_load_dwordx4 s[16:19], s[0:1], 16    ; v, out")
    if cfg.stamps: A("s_load_dwordx2 s[36:37], s[0:1], 40    ; ws")
    A("s_cmp_ge_u32 s2, 256")
    A("s_cbranch_scc1 L_end")
    npf=0
    if cfg.codepf:
        A("s_getpc_b64 s[6:7]")
        A(f"v_mul_u32_u24 v{t1}, 20, v0")
        A(f"global_load_dword v{S[1]+8}, v{t1}, s[6:7]")
        npf=1
    A(f"v_lshrrev_b32 v{t0}, 6, v0")
    A("v_and_b32 v0, 63, v0                   ; lane")
    A(f"v_readfirstlane_b32 s{sw}, v{t0}")
    A(f"v_lshlrev_b32 v{vlane16}, 4, v0")
    A("s_and_b32 s3, s2, 7")
    A("s_lshr_b32 s4, s2, 6")
    A("s_lshl_b32 s4, s4, 3")
    A("s_add_u32 s3, s3, s4                   ; head")
    A(f"s_mul_i32 s3, s3, {HEADB}")
    A("s_bfe_u32 s4, s2, 0x30003")
    A("s_mul_i32 s4, s4, 10240")
    A(f"s_mul_i32 s5, s{sw}, 1280")
    A("s_add_u32 s35, s4, s5")
    A(f"s_add_u32 s5, s5, {QST}")
    A("s_mov_b32 m0, s5")
    A(f"s_and_b32 s{sisV}, s{sw}, 1")
    A(f"s_cselect_b32 s30, 0, {KBASE-2048-VBASE}")
    A(f"s_addk_i32 s30, {VBASE}")
    A(f"s_lshr_b32 s5, s{sw}, 1")
    A(f"s_lshl_b32 s{ssrc}, s5, 11")
    A(f"s_add_u32 s{sm0}, s30, s{ssrc}")
    A(f"s_mov_b32 s14, {HEADB}")
    A("s_mov_b32 s15, 0x20000")
    A(f"s_lshr_b32 s{skh}, s{sw}, 2")
    A("s_waitcnt lgkmcnt(0)")
    stamp(1)
    A("s_add_u32 s12, s10, s3")
    A("s_addc_u32 s13, s11, 0")
    A("s_add_u32 s8, s8, s3")
    A("s_addc_u32 s9, s9, 0")
    A(f"s_mov_b32 s10, {HEADB}")
    A("s_mov_b32 s11, 0x20000")
    A(f"buffer_load_dwordx4 v{vlane16}, {s(sQ,4)}, s35 offen lds")
    A("s_mov_b64 exec, 0xffff")
    A(f"buffer_load_dwordx4 v{vlane16}, {s(sQ,4)}, s35 offen offset:1024 lds")
    A("s_mov_b64 exec, -1")
    A("s_add_u32 s20, s18, s3")
    A("s_addc_u32 s21, s19, 0")
    A("s_add_u32 s16, s16, s3")
    A("s_addc_u32 s17, s17, 0")
    A(f"s_cmp_eq_u32 s{sisV}, 1")
    A("s_cselect_b32 s16, s16, s12")
    A("s_cselect_b32 s17, s17, s13")
    A(f"s_mov_b32 m0, s{sm0}")
    A(f"s_mov_b32 s18, {HEADB}")
    A("s_mov_b32 s19, 0x20000")
    A(f"buffer_load_dwordx4 v{vlane16}, {s(sD,4)}, s{ssrc} offen lds")
    A(f"buffer_load_dwordx4 v{vlane16}, {s(sD,4)}, s{ssrc} offen offset:1024 lds")
    A(f"s_cmp_eq_u32 s{skh}, 0")
    A("s_cbranch_scc1 L_awave")
    if cfg.priodma is not None: A(f"s_setprio {cfg.priodma}")
    A(f"s_cmp_eq_u32 s{sisV}, 1")
    A("s_cselect_b32 s7, 0, 2048")
    A(f"s_add_u32 s6, s7, {VHALF}")
    A(f"s_cmp_ge_u32 s{sw}, 6")
    A(f"s_cselect_b32 s{ssrc}, s6, 0x2000")
    A("s_cselect_b32 s7, s7, 0")
    A(f"s_cselect_b32 s{send}, {VHALF}, 0")
    A(f"s_add_u32 s{send}, s{send}, {VHALF}")
    A(f"s_add_u32 s{sm0}, s30, s{ssrc}")
    A(f"s_sub_u32 s{sm0}, s{sm0}, s7")
    for i in range(cfg.e0//4): dma4()
    stamp(2)
    A("s_branch L_bwave")
    A("L_awave:")
    stamp(2)
    A(f"s_lshl_b32 s5, s{sw}, 10")
    A(f"v_add_u32 v{S[0]}, s5, v{vlane16}")
    A(f"v_mov_b32 v{S[0]+8}, 0x3f80")
    A(f"v_mov_b32 v{S[0]+9}, 0")
    A(f"v_mov_b32 v{S[0]+10}, 0x3f80")
    A(f"v_mov_b32 v{S[0]+11}, 0")
    A(f"ds_write_b128 v{S[0]}, {v(S[0]+8,4)}")
    setup(0)
    A(f"s_cmp_eq_u32 s{skh}, 1")
    A(f"s_waitcnt vmcnt(0) lgkmcnt(0)")
    A(f"s_setprio {cfg.prio0}")
    A("s_barrier")
    stamp(3)
    A(f"ds_read_b64 {v(K8[0],2)}, v{ak} offset:16")
    rdQ()
    A(f"ds_read_b64 {v(K16[0],2)}, v{ak}")
    A(f"ds_read_b64 {v(K16[0]+2,2)}, v{ak} offset:8")
    rdK(1,1)
    rdV(0,V[0])
    A("s_waitcnt lgkmcnt(13)")
    scale(Q8); scale(Q8+1)
    A("s_waitcnt lgkmcnt(11)")
    A("s_nop 0")
    mf2b(S[0],K8[0],Q8)
    for r in range(Qa16,Qa16+4): scale(r)
    A("s_waitcnt lgkmcnt(7)")
    A("s_nop 0")
    mf16(S[0],K16[0],Qa16)
    for r in range(Qb16,Qb16+4): scale(r)
    A("L_join:")
    stamp(4)
    if cfg.stamps: A("s_memtime s[60:61]")
    A(f"s_setprio {cfg.prio0}")
    A("s_nop 0")
    XW=t0; XR=t1
    A("L_loop:")
    for t in range(32):
        p=t&1;q=p^1
        Sa=S[p];Sb=Sa+16;Na=S[q];Nb=Na+16
        if t in cfg.prio: A(f"s_setprio {cfg.prio[t]}")
        mf16(Sb,K16[p],Qb16); exps(Sa,0)
        if t>0: smf(Ob,V[q]+4,Nb+8)
        exps(Sa,4)
        A("s_waitcnt lgkmcnt(0)")
        if t==cfg.abar0:
            A(f"s_cbranch_scc1 L_na0")
            stamp(9)
            A("s_barrier                              ; b0'")
            stamp(10)
            A(f"L_na0:")
        if t==cfg.abar:
            A(f"s_cbranch_scc1 L_na")
            stamp(7)
            A("s_barrier                              ; b1")
            stamp(8)
            A(f"L_na:")
        if t==cfg.bbar:
            A(f"s_cbranch_scc0 L_nb")
            A("s_waitcnt vmcnt(0)")
            stamp(7)
            A("s_barrier                              ; b1")
            stamp(8)
            A(f"L_nb:")
        if t+2<32: rdK(t+2,p)
        if t+1<32: rdV(t+1,V[q])
        if t+1<32: mf2b(Na,K8[q],Q8)
        exps(Sa,8,8)
        smf(Oa,V[p],Sa); exps(Sb,0)
        smf(Oa,V[p]+4,Sa+8); exps(Sb,4)
        if t+1<32: mf16(Na,K16[q],Qa16)
        exps(Sb,8)
        if t==31:
            A(f"v_add_u32 v{XW}, s38, v{vlane16}")
            A("s_nop 2")
            for i in range(3): A(f"ds_write_b128 v{XW}, {v(Oa+4*i,4)} offset:{1024*i}")
        smf(Ob,V[p],Sb); exps(Sb,12)
    A("s_nop 1")
    smf(Ob,V[1]+4,S[1]+16+8)
    A(f"v_add_u32 v{XR}, s39, v{vlane16}")
    stamp(5)
    if cfg.stamps: A("s_memtime s[62:63]")
    A("s_waitcnt lgkmcnt(0)")
    A("s_barrier")
    X=S[0]
    for i in (2,0,1): A(f"ds_read_b128 {v(X+4*i,4)}, v{XR} offset:{1024*i}")
    A("s_nop 5")
    A("s_waitcnt lgkmcnt(2)")
    lsum=X+12
    A(f"v_add_f32 v{X+13}, v{Ob+8}, v{X+8}")
    A(f"v_add_f32 v{lsum}, v{Ob+8}, v{X+8}")
    for i in (8,10): A(f"v_pk_add_f32 {v(X+i,2)}, {v(Ob+i,2)}, {v(X+i,2)}")
    A(f"v_permlane32_swap_b32 v{X+13}, v{lsum}")
    A("s_waitcnt lgkmcnt(0)")
    A(f"v_pk_add_f32 {v(X,2)}, {v(Ob,2)}, {v(X,2)}")
    A(f"v_rcp_f32 v{X+14}, v{lsum}")
    for i in (2,4,6): A(f"v_pk_add_f32 {v(X+i,2)}, {v(Ob+i,2)}, {v(X+i,2)}")
    P=X+16
    for i in range(0,12,2):
        A(f"v_pk_mul_f32 {v(X+i,2)}, {v(X+i,2)}, {v(X+14,2)} op_sel_hi:[1,0]")
    if not cfg.coal:
        for i in range(4): A(f"v_cvt_pk_bf16_f32 v{P+i}, v{X+2*i}, v{X+2*i+1}")
        A(f"buffer_store_dwordx4 {v(P,4)}, v{vq}, {s(sO,4)}, s{sqb} offen {cfg.store_mod}")
        for i in range(4,6): A(f"v_cvt_pk_bf16_f32 v{P+i}, v{X+2*i}, v{X+2*i+1}")
        A("s_mov_b32 exec_hi, 0")
        A(f"buffer_store_dwordx2 {v(P+4,2)}, v{vq}, {s(sO,4)}, s{sqb} offen offset:32 {cfg.store_mod}")
        A("s_mov_b64 exec, -1")
    else:
        A(f"v_add_u32 v{XW}, s39, v{vq}")
        for i in range(4): A(f"v_cvt_pk_bf16_f32 v{P+i}, v{X+2*i}, v{X+2*i+1}")
        A(f"ds_write2_b64 v{XW}, {v(P,2)}, {v(P+2,2)} offset0:0 offset1:1")
        for i in range(4,6): A(f"v_cvt_pk_bf16_f32 v{P+i}, v{X+2*i}, v{X+2*i+1}")
        A("s_mov_b32 exec_hi, 0")
        A(f"ds_write_b64 v{XW}, {v(P+4,2)} offset:32")
        A("s_mov_b64 exec, -1")
        A(f"ds_read_b128 {v(X,4)}, v{XR}")
        A(f"ds_read_b128 {v(X+4,4)}, v{XR} offset:1024")
        A("s_waitcnt lgkmcnt(1)")
        A(f"buffer_store_dwordx4 {v(X,4)}, v{vlane16}, {s(sO,4)}, s{sqb} offen {cfg.store_mod}")
        A("s_mov_b64 exec, 0xffff")
        A("s_waitcnt lgkmcnt(0)")
        A(f"buffer_store_dwordx4 {v(X+4,4)}, v{vlane16}, {s(sO,4)}, s{sqb} offen offset:1024 {cfg.store_mod}")
        A("s_mov_b64 exec, -1")
    if cfg.stamps:
        A("s_waitcnt vmcnt(0)")
        stamp(6)
        A("s_waitcnt lgkmcnt(0)")
        A(f"s_lshl_b32 s5, s2, 3")
        A(f"s_add_u32 s5, s5, s{sw}")
        A(f"s_lshl_b32 s5, s5, 6")
        A(f"v_mov_b32 v{t0}, s5")
        A("s_mov_b64 exec, 1")
        A("s_sub_u32 s66, s66, s64")
        A(f"v_mov_b32 v{t1}, s66")
        A(f"global_store_dword v{t0}, v{t1}, s[36:37] offset:60")
        for i in range(11):
            A(f"v_mov_b32 v{t1}, s{sT+2*i}")
            A(f"global_store_dword v{t0}, v{t1}, s[36:37] offset:{4*i}")
    if cfg.padk is not None:
        A("s_waitcnt vmcnt(0)")
        stamp(6)
        A("s_waitcnt lgkmcnt(0)")
        A(f"s_add_u32 s5, s{sT+2*cfg.padk}, 4000")
        A("L_spin:")
        A("s_memrealtime s[6:7]")
        A("s_waitcnt lgkmcnt(0)")
        A("s_sub_u32 s6, s6, s5")
        A("s_cmp_lt_i32 s6, 0")
        A("s_cbranch_scc1 L_spin")
    A("L_end:")
    A("s_endpgm")
    A("L_bwave:")
    setup(1)
    A(f"s_mov_b32 s5, {VHALF}")
    A(f"s_waitcnt vmcnt({cfg.e0})")
    A("s_barrier                              ; b0")
    stamp(3)
    rdQ()
    dma4()
    A(f"buffer_load_dwordx2 {v(K8[0],2)}, v{vq}, {s(sK,4)}, s5 offen offset:16")
    A(f"buffer_load_dwordx4 {v(K16[0],4)}, v{vq}, {s(sK,4)}, s5 offen")
    A(f"buffer_load_dwordx2 {v(K8[1],2)}, v{vq}, {s(sK,4)}, s5 offen offset:{1280+16}")
    A(f"buffer_load_dwordx4 {v(K16[1],4)}, v{vq}, {s(sK,4)}, s5 offen offset:1280")
    A("s_waitcnt lgkmcnt(0)")
    for r in [Q8,Q8+1]+list(range(Qa16,Qa16+8)): scale(r)
    for i in range((cfg.e1-cfg.e0)//4-1): dma4()
    assert cfg.m1<=cfg.e0+4
    A(f"s_waitcnt vmcnt({cfg.e1-cfg.e0-4})")
    mf2b(S[0],K8[0],Q8)
    stamp(9)
    A("s_barrier                              ; b0'")
    stamp(10)
    rdV(0,V[0])
    A("L_dma:")
    dma4(2)
    A(f"s_cmp_lt_u32 s{ssrc}, s{send}")
    A("s_cbranch_scc1 L_dma")
    A("s_nop 7")
    mf16(S[0],K16[0],Qa16)
    A("s_nop 6")
    A(f"s_cmp_eq_u32 s{skh}, 1")
    A("s_branch L_join")
    if cfg.codepf:
        A(".fill 128, 4, 0xbf800000")
    hdr=f"""; fused attention forward, B=1 H=32 S=2048 Dh=20, bf16  (generated by gen/genY4.py)
; @launch grid=(256,1,1) block=(512,1,1) lds=163840
.amdgcn_target "amdgcn-amd-amdhsa--gfx950"
.text
.globl {NAME}_kernel
.p2align 8
.type {NAME}_kernel,@function
{NAME}_kernel:
"""
    nv=(NV+7)//8*8
    ftr=f""".section .rodata,"a"
.p2align 6
.amdhsa_kernel {NAME}_kernel
  .amdhsa_next_free_vgpr {nv}
  .amdhsa_next_free_sgpr 72
  .amdhsa_accum_offset {nv}
  .amdhsa_group_segment_fixed_size 0
  .amdhsa_kernarg_size 48
  .amdhsa_user_sgpr_count 2
  .amdhsa_user_sgpr_kernarg_segment_ptr 1
  .amdhsa_system_sgpr_workgroup_id_x 1
.end_amdhsa_kernel
"""
    body="\n".join((x if x.endswith(":") else "    "+x) for x in L)
    body=body.replace("s_memtime s[60:61]","s_memtime s[64:65]").replace("s_memtime s[62:63]","s_memtime s[66:67]")
    return hdr+body+"\n"+ftr
if __name__=="__main__":
    cfg=Cfg()
    out=sys.argv[1]
    for a in sys.argv[2:]:
        k,val=a.split("=",1)
        setattr(cfg,k,eval(val))
    open(out,"w").write(gen(cfg))
```

```python
import sys, math, struct
NAME="standalone__fused_io_aware_attn__prompt"
def f32bits(x): return struct.unpack("<I",struct.pack("<f",x))[0]
def v(b,n=1): return f"v[{b}:{b+n-1}]" if n>1 else f"v{b}"
def s(b,n=1): return f"s[{b}:{b+n-1}]" if n>1 else f"s{b}"

class Cfg:
    e0=16
    n1=88
    abar0=4; bbar0=1
    abar=10; bbar=2
    prio={26:2,30:1,31:0}
    prio0=3
    stamps=False
    prof=False
    G=3
    padk=None
    store_mod="sc1"
    pat=[3,9,8,3,3,3,3]
    lds={(1,3):['W','K','V']}
    bdelay=0
    earlybar=True
    force_fb=False

def gen(cfg):
    L=[]
    A=L.append
    HEADB=81920
    VBASE=4096; VHALF=40960; KBASE=VBASE+2*VHALF; KHALF=38912
    QST=VBASE+VHALF+28*1024
    G=cfg.G
    NAV=(32+G-1)//G
    idx=1; ak=2; t0=3; t1=4; t2=5; vlane16=6; vq=7
    Qa16=8; Qb16=12; Q8=16; t3=18; t4=19
    K16=[20,28]; K8=[24,32]
    V=[36,44]
    Oa=52; Ob=68
    S=[84,116]
    av=148
    NV=av+NAV
    sQ=8; sK=12; sV=16; sO=20; sD=28
    sw=24; sj=25; skh=26; sqb=27; sflag=34
    sT=40
    def stamp(k):
        if cfg.stamps or cfg.padk is not None:
            A(f"s_memrealtime {s(sT+2*k,2)}")
    def prof(r):
        if cfg.prof: A(f"s_memtime s[{r}:{r+1}]")
    def smf(O,Aa,B): A(f"v_smfmac_f32_32x32x32_bf16 {v(O,16)}, {v(Aa,4)}, {v(B,8)}, v{idx}")
    def mf16(D,Aa,B): A(f"v_mfma_f32_32x32x16_bf16 {v(D,16)}, {v(Aa,4)}, {v(B,4)}, {v(D,16)}")
    def mf2b(D,Aa,B): A(f"v_mfma_f32_32x32x4_2b_bf16 {v(D,32)}, {v(Aa,2)}, {v(B,2)}, 0 cbsz:1 abid:1")
    def rdV(t,dst,rng=(0,4)):
        for j,o in list(enumerate([0,160,640,800]))[rng[0]:rng[1]]:
            A(f"ds_read_b64_tr_b16 {v(dst+2*j,2)}, v{av+t//G} offset:{(t%G)*1280+o}")
    def rdK(t,p):
        A(f"ds_read_b64 {v(K16[p],2)}, v{ak} offset:{1280*t}")
        A(f"ds_read_b64 {v(K16[p]+2,2)}, v{ak} offset:{1280*t+8}")
        A(f"ds_read_b64 {v(K8[p],2)}, v{ak} offset:{1280*t+16}")
    assert (cfg.abar0+2)*1280 <= 8*1024 and (cfg.bbar0+2)*1280 <= 4*1024
    assert (cfg.abar+2)*1280 <= 16*1024 and (cfg.bbar+2)*1280 <= 8*1024
    assert (cfg.abar+2)*1280-2048 >= 12288 and (cfg.abar+1)*1280 >= 12288
    assert cfg.abar0<cfg.abar and cfg.bbar0<cfg.bbar
    cs=math.log2(math.e)/math.sqrt(20.0)

    stamp(0)
    A("s_load_dwordx4 s[8:11], s[0:1], 0      ; q, k")
    A("s_load_dwordx4 s[16:19], s[0:1], 16    ; v, out")
    if cfg.stamps: A("s_load_dwordx2 s[36:37], s[0:1], 40    ; ws")
    A("s_cmp_ge_u32 s2, 256")
    A("s_cbranch_scc1 L_end")
    A("s_getpc_b64 s[6:7]")
    A(f"v_mul_u32_u24 v{t1}, 20, v0")
    A(f"global_load_dword v{S[1]+8}, v{t1}, s[6:7]")
    A(f"v_lshrrev_b32 v{t0}, 6, v0")
    A("v_and_b32 v0, 63, v0                   ; lane")
    A(f"v_readfirstlane_b32 s{sw}, v{t0}")
    A(f"v_lshlrev_b32 v{vlane16}, 4, v0")
    A(f"v_lshlrev_b32 v{t2}, 2, v0")
    A("s_and_b32 s3, s2, 7")
    A("s_lshr_b32 s4, s2, 6")
    A("s_lshl_b32 s4, s4, 3")
    A("s_add_u32 s3, s3, s4                   ; head")
    A(f"s_mul_i32 s3, s3, {HEADB}")
    A("s_bfe_u32 s4, s2, 0x30003")
    A("s_mul_i32 s4, s4, 10240")
    A(f"s_mul_i32 s33, s{sw}, 1280")
    A("s_add_u32 s35, s4, s33")
    A(f"s_and_b32 s32, s{sw}, 1")
    A(f"s_cselect_b32 s5, 0, {KBASE-2048-VBASE}")
    A(f"s_cselect_b32 s7, 2048, 0")
    A(f"s_addk_i32 s5, {VBASE}")
    A(f"s_lshr_b32 s6, s{sw}, 1")
    A("s_lshl_b32 s38, s6, 11")
    A("s_add_u32 m0, s5, s38")
    A("s_lshl_b32 s39, s6, 10")
    A("s_add_u32 s5, s5, s7")
    A("s_add_u32 s5, s5, s39")
    A(f"s_add_u32 s5, s5, {KHALF}")
    A(f"s_add_u32 s39, s39, {VHALF}")
    A(f"s_mov_b32 s14, {HEADB}")
    A("s_mov_b32 s15, 0x20000")
    A(f"s_mov_b32 s30, {HEADB}")
    A("s_mov_b32 s31, 0x20000")
    A("s_waitcnt lgkmcnt(0)")
    stamp(1)
    A("s_add_u32 s12, s10, s3")
    A("s_addc_u32 s13, s11, 0")
    A("s_add_u32 s20, s18, s3")
    A("s_addc_u32 s21, s19, 0")
    A("s_add_u32 s16, s16, s3")
    A("s_addc_u32 s17, s17, 0")
    A(f"s_mov_b32 s18, {HEADB}")
    A("s_mov_b32 s19, 0x20000")
    A(f"s_cmp_eq_u32 s{sw}, 8")
    A("s_cbranch_scc1 L_loader")
    A("s_add_u32 s8, s8, s3")
    A("s_addc_u32 s9, s9, 0")
    A(f"s_mov_b32 s10, {HEADB}")
    A("s_mov_b32 s11, 0x20000")
    QR=S[0]+8
    A(f"buffer_load_dwordx4 {v(QR,4)}, v{vlane16}, {s(sQ,4)}, s35 offen")
    A(f"buffer_load_dword v{QR+4}, v{t2}, {s(sQ,4)}, s35 offen offset:1024")
    A("s_cmp_eq_u32 s32, 1")
    A("s_cselect_b32 s28, s16, s12")
    A("s_cselect_b32 s29, s17, s13")
    A(f"buffer_load_dwordx4 v{vlane16}, {s(sD,4)}, s38 offen lds")
    A(f"buffer_load_dwordx4 v{vlane16}, {s(sD,4)}, s38 offen offset:1024 lds")
    A("s_mov_b32 m0, s5")
    A(f"s_lshr_b32 s{skh}, s{sw}, 2")
    A(f"buffer_load_dwordx4 v{vlane16}, {s(sD,4)}, s39 offen lds")
    stamp(2)
    qa=V[1]; qb=V[1]+1; q8=V[1]+2; qw=V[1]+3; qw2=V[1]+4
    A(f"s_mov_b32 s22, {HEADB}")
    A("s_mov_b32 s23, 0x20000")
    A(f"s_and_b32 s{sj}, s{sw}, 3")
    A(f"s_mov_b32 s{sflag}, 0")
    A(f"s_add_u32 s33, s33, {QST}")
    A(f"v_add_u32 v{qw}, s33, v{vlane16}")
    A(f"v_add_u32 v{qw2}, s33, v{t2}")
    A(f"s_lshl_b32 s5, s{sw}, 9")
    A(f"v_lshl_add_u32 v{S[1]}, v0, 3, s5")
    A(f"v_mov_b32 v{S[1]+2}, 0x3f80")
    A(f"v_mov_b32 v{S[1]+3}, 0")
    A(f"ds_write_b64 v{S[1]}, {v(S[1]+2,2)}")
    A(f"v_and_b32 v{t0}, 31, v0")
    A(f"v_lshrrev_b32 v{t1}, 5, v0            ; h")
    A(f"v_mul_u32_u24 v{t2}, 40, v{t0}")
    A(f"v_lshl_add_u32 v{vq}, v{t1}, 4, v{t2}  ; row*40 + 16h")
    A(f"s_mul_i32 s5, s{sj}, 2560")
    A(f"s_mul_i32 s6, s{skh}, 1280")
    A("s_add_u32 s7, s5, s6")
    A(f"s_add_u32 s{sqb}, s4, s7")
    A(f"s_add_u32 s7, s7, {QST}")
    A(f"v_add_u32 v{qb}, s7, v{vq}")
    A("s_sub_u32 s7, s5, s6")
    A(f"s_add_u32 s7, s7, {QST+1280}")
    A(f"v_add_u32 v{qa}, s7, v{vq}")
    A(f"v_xor_b32 v{t3}, s{skh}, v{t1}")
    A(f"v_xor_b32 v{t3}, 1, v{t3}")
    A(f"v_mul_u32_u24 v{t3}, 0x500, v{t3}")
    A(f"s_add_u32 s5, s5, {QST+32}")
    A(f"v_add3_u32 v{q8}, v{t3}, v{t2}, s5")
    A(f"s_mul_i32 s5, s{skh}, {KHALF}")
    A(f"s_add_u32 s5, s5, {KBASE-2048}")
    A(f"v_add_u32 v{ak}, s5, v{vq}")
    A(f"v_bfe_u32 v{t0}, v0, 2, 2             ; r")
    A(f"v_lshl_add_u32 v{t0}, v{t1}, 3, v{t0}")
    A(f"v_mul_u32_u24 v{t0}, 40, v{t0}")
    A(f"v_and_b32 v{t2}, 1, v0")
    A(f"v_lshl_add_u32 v{t0}, v{t2}, 4, v{t0}  ; + 16*(c&1)")
    A(f"v_bfe_u32 v{t2}, v0, 1, 1")
    A(f"v_lshl_add_u32 v{t0}, v{t2}, 3, v{t0}  ; + 8*(c>>1)")
    A(f"v_bfe_u32 v{t2}, v0, 4, 1")
    A(f"v_lshl_add_u32 v{t0}, v{t2}, 5, v{t0}  ; + 32*g")
    A(f"s_mul_i32 s5, s{skh}, {VHALF}")
    A(f"s_addk_i32 s5, {VBASE}")
    A(f"v_add_u32 v{t0}, s5, v{t0}")
    A(f"v_and_b32 v{t2}, 19, v0               ; g*16 + c")
    A(f"v_cmp_lt_u32 vcc, 16, v{t2}")
    A(f"v_cmp_eq_u32 s[6:7], 17, v{t2}")
    A(f"v_mov_b32 v{S[1]+4}, 0x40000")
    A(f"v_mov_b32 v{S[1]+5}, 224")
    A(f"v_cndmask_b32 v{S[1]+4}, v{S[1]+4}, v{S[1]+5}, s[6:7]")
    A(f"v_mov_b32 v{S[1]+5}, {G*1280}")
    A(f"v_cndmask_b32 v{av}, v{t0}, v{S[1]+4}, vcc")
    A(f"v_cndmask_b32 v{S[1]+5}, v{S[1]+5}, 0, vcc")
    A(f"v_mov_b32 v{idx}, 0xdddddddd")
    for i in range(1,NAV): A(f"v_add_u32 v{av+i}, v{av+i-1}, v{S[1]+5}")
    for i in range(0,32,2): A(f"v_mov_b64 {v(Oa+i,2)}, 0")
    A(f"s_mul_i32 s5, s{sj}, 3072")
    A(f"s_add_u32 s6, s5, {KBASE}")
    A(f"s_add_u32 s7, s5, {VBASE}")
    A(f"s_cmp_eq_u32 s{skh}, 1")
    A("s_cselect_b32 s38, s6, s7")
    A("s_cselect_b32 s39, s7, s6")
    A(f"s_mov_b32 s6, {f32bits(cs):#x}          ; log2(e)/sqrt(20)")
    A("s_mov_b32 s7, s6")
    T=S[0]+16
    A("s_waitcnt vmcnt(3)")
    for i in range(5):
        A(f"v_lshlrev_b32 v{T+2*i}, 16, v{QR+i}")
        A(f"v_and_b32 v{T+2*i+1}, 0xffff0000, v{QR+i}")
    for i in range(5): A(f"v_pk_mul_f32 {v(T+2*i,2)}, {v(T+2*i,2)}, s[6:7]")
    for i in range(5): A(f"v_cvt_pk_bf16_f32 v{QR+i}, v{T+2*i}, v{T+2*i+1}")
    A(f"ds_write_b128 v{qw}, {v(QR,4)}")
    A(f"ds_write_b32 v{qw2}, v{QR+4} offset:1024")
    A(f"s_setprio {cfg.prio0}")
    A("s_waitcnt vmcnt(0) lgkmcnt(0)")
    A("s_barrier")
    stamp(3); prof(44)
    A(f"ds_read_b64 {v(K8[0],2)}, v{ak} offset:16")
    A(f"ds_read_b64 {v(Q8,2)}, v{q8}")
    A(f"ds_read_b64 {v(K16[0],2)}, v{ak}")
    A(f"ds_read_b64 {v(K16[0]+2,2)}, v{ak} offset:8")
    A(f"ds_read_b64 {v(Qa16,2)}, v{qa}")
    A(f"ds_read_b64 {v(Qa16+2,2)}, v{qa} offset:8")
    A(f"ds_read_b64 {v(Qb16,2)}, v{qb}")
    A(f"ds_read_b64 {v(Qb16+2,2)}, v{qb} offset:8")
    if cfg.bdelay:
        A("s_cbranch_scc0 L_nd")
        for i in range(cfg.bdelay): A("s_nop 15")
        A("L_nd:")
    A("s_waitcnt lgkmcnt(6)")
    mf2b(S[0],K8[0],Q8)
    rdK(1,1)
    rdV(0,V[0])
    A("s_nop 9")
    A("s_waitcnt lgkmcnt(7)")
    mf16(S[0],K16[0],Qa16)
    stamp(4); prof(46)
    if cfg.stamps: A("s_memtime s[64:65]")
    A("s_nop 10")
    XW=t0; XR=t1
    X=S[0]
    A("L_loop:")
    for t in range(32):
        p=t&1;q=p^1
        Sa=S[p];Sb=Sa+16;Na=S[q];Nb=Na+16
        def W():
            A("s_waitcnt lgkmcnt(0)")
            if cfg.prof and t%2==0: A(f"s_memtime s[{68+t}:{69+t}]")
            if t in cfg.prio: A(f"s_setprio {cfg.prio[t]}")
            for (st,cond,nm,k) in ((cfg.abar0,1,"a0",9),(cfg.bbar0,0,"b0",9),(cfg.abar,1,"a1",7),(cfg.bbar,0,"b1",7)):
                if t==st:
                    A(f"s_cbranch_scc{cond} L_n{nm}")
                    stamp(k)
                    A("s_barrier")
                    stamp(k+1)
                    A(f"L_n{nm}:")
        def grp(g):
            if g=="W": W()
            if g=="K" and t+2<32: rdK(t+2,p)
            if g[0]=="V" and t+1<32: rdV(t+1,V[q],{"V":(0,4),"V0":(0,2),"V1":(2,4)}[g])
        def ex(lo,hi):
            for e in range(lo,hi): A(f"v_exp_f32 v{Sa+e}, v{Sa+e}")
        if t<31:
            M=[lambda:mf16(Sb,K16[p],Qb16),
               (lambda:smf(Ob,V[q]+4,Nb+8)) if t>0 else None,
               lambda:mf2b(Na,K8[q],Q8),
               lambda:smf(Oa,V[p],Sa),
               lambda:smf(Oa,V[p]+4,Sa+8),
               lambda:mf16(Na,K16[q],Qa16),
               lambda:smf(Ob,V[p],Sb)]
            pat=cfg.pat
            cc=[sum(pat[:i]) for i in range(8)]
            assert cc[7]==32 and cc[3]>=10 and cc[4]>=18 and cc[6]>=26 and pat[0]>=1
            e=0
            for i in range(7):
                if M[i]: M[i]()
                for k in range(pat[i]+1):
                    for g in cfg.lds.get((i,k),[]): grp(g)
                    if k<pat[i]:
                        ex(e,e+1); e+=1
        else:
            mf16(Sb,K16[p],Qb16); ex(0,3)
            smf(Ob,V[q]+4,Nb+8); ex(3,6)
            W()
            ex(6,10)
            smf(Oa,V[p],Sa); ex(10,18)
            smf(Oa,V[p]+4,Sa+8); ex(18,23)
            A(f"v_add_u32 v{XW}, s38, v{vlane16}")
            A(f"v_add_u32 v{XR}, s39, v{vlane16}")
            ex(23,24)
            for k in range(3): A(f"ds_write_b128 v{XW}, {v(Oa+4*k,4)} offset:{1024*k}")
            ex(24,26)
            smf(Ob,V[p],Sb)
            if cfg.earlybar:
                ex(26,28)
                A("s_waitcnt lgkmcnt(0)")
                A("s_barrier")
                prof(50)
                for i in (2,0,1): A(f"ds_read_b128 {v(X+4*i,4)}, v{XR} offset:{1024*i}")
                ex(28,32)
            else: ex(26,32)
            A("s_nop 1")
            smf(Ob,V[p]+4,Sb+8)
    stamp(5); prof(48)
    if cfg.stamps: A("s_memtime s[66:67]")
    if not cfg.earlybar:
        A("s_waitcnt lgkmcnt(0)")
        A("s_barrier")
        prof(50)
        for i in (2,0,1): A(f"ds_read_b128 {v(X+4*i,4)}, v{XR} offset:{1024*i}")
        A(f"v_add_u32 v{XW}, s39, v{vq}")
        A("s_nop 5")
    else:
        A(f"v_add_u32 v{XW}, s39, v{vq}")
        A("s_nop 9")
    A("s_waitcnt lgkmcnt(0)")
    lsum=X+12
    A(f"v_add_f32 v{X+13}, v{Ob+8}, v{X+8}")
    A(f"v_add_f32 v{lsum}, v{Ob+8}, v{X+8}")
    for i in (0,2): A(f"v_pk_add_f32 {v(X+i,2)}, {v(Ob+i,2)}, {v(X+i,2)}")
    A("L_norm:")
    A(f"v_permlane32_swap_b32 v{X+13}, v{lsum}")
    for i in (4,6): A(f"v_pk_add_f32 {v(X+i,2)}, {v(Ob+i,2)}, {v(X+i,2)}")
    A(f"v_rcp_f32 v{X+14}, v{lsum}")
    for i in (8,10): A(f"v_pk_add_f32 {v(X+i,2)}, {v(Ob+i,2)}, {v(X+i,2)}")
    P=X+16; R=X+24
    for i in range(0,8,2):
        A(f"v_pk_mul_f32 {v(X+i,2)}, {v(X+i,2)}, {v(X+14,2)} op_sel_hi:[1,0]")
    for i in range(4): A(f"v_cvt_pk_bf16_f32 v{P+i}, v{X+2*i}, v{X+2*i+1}")
    A(f"ds_write2_b64 v{XW}, {v(P,2)}, {v(P+2,2)} offset0:0 offset1:1")
    for i in range(8,12,2):
        A(f"v_pk_mul_f32 {v(X+i,2)}, {v(X+i,2)}, {v(X+14,2)} op_sel_hi:[1,0]")
    for i in range(4,6): A(f"v_cvt_pk_bf16_f32 v{P+i}, v{X+2*i}, v{X+2*i+1}")
    A("s_mov_b32 exec_hi, 0")
    A(f"ds_write_b64 v{XW}, {v(P+4,2)} offset:32")
    A("s_mov_b64 exec, -1")
    A(f"ds_read_b128 {v(R,4)}, v{XR}")
    A(f"ds_read_b128 {v(R+4,4)}, v{XR} offset:1024")
    for i in (0,4,8): A(f"v_pk_add_f32 {v(X+i,2)}, {v(X+i,2)}, {v(X+i+2,2)}")
    A(f"v_cmp_nle_f32 vcc, 1.0, v{lsum}")
    A(f"v_pk_add_f32 {v(X,2)}, {v(X,2)}, {v(X+4,2)}")
    A(f"s_mov_b32 s5, {f32bits(2.0**100):#x}")
    A(f"v_pk_add_f32 {v(X,2)}, {v(X,2)}, {v(X+8,2)}")
    A(f"v_cmp_ngt_f32 s[6:7], s5, v{lsum}")
    A(f"v_add_f32 v{X}, v{X}, v{X+1}")
    A("s_or_b64 s[6:7], s[6:7], vcc")
    A("s_movk_i32 s5, 0x207")
    A(f"v_cmp_class_f32 vcc, v{X}, s5")
    A("s_waitcnt lgkmcnt(1)")
    A(f"buffer_store_dwordx4 {v(R,4)}, v{vlane16}, {s(sO,4)}, s{sqb} offen {cfg.store_mod}")
    A("s_mov_b64 exec, 0xffff")
    A("s_waitcnt lgkmcnt(0)")
    A(f"buffer_store_dwordx4 {v(R+4,4)}, v{vlane16}, {s(sO,4)}, s{sqb} offen offset:1024 {cfg.store_mod}")
    A("s_mov_b64 exec, -1")
    A("s_or_b64 s[6:7], s[6:7], vcc")
    if cfg.force_fb: A("s_cmp_eq_u32 s2, s2")
    A("s_cbranch_scc1 L_fallback")
    A("L_done:")
    if cfg.stamps:
        A("s_waitcnt vmcnt(0)")
        stamp(6)
        A("s_waitcnt lgkmcnt(0)")
        A(f"s_lshl_b32 s5, s2, 3")
        A(f"s_add_u32 s5, s5, s{sw}")
        A(f"s_lshl_b32 s5, s5, 6")
        A(f"v_mov_b32 v{t0}, s5")
        A("s_mov_b64 exec, 1")
        A("s_sub_u32 s66, s66, s64")
        A(f"v_mov_b32 v{t1}, s66")
        A(f"global_store_dword v{t0}, v{t1}, s[36:37] offset:60")
        for i in range(11):
            A(f"v_mov_b32 v{t1}, s{sT+2*i}")
            A(f"global_store_dword v{t0}, v{t1}, s[36:37] offset:{4*i}")
    if cfg.prof:
        A("s_load_dwordx2 s[36:37], s[0:1], 40")
        A("s_memtime s[40:41]")
        A("s_waitcnt vmcnt(0)")
        A("s_memtime s[42:43]")
        A("s_waitcnt lgkmcnt(0)")
        A(f"s_lshl_b32 s5, s2, 3")
        A(f"s_add_u32 s5, s5, s{sw}")
        A(f"s_lshl_b32 s5, s5, 7")
        A(f"v_mov_b32 v{t0}, s5")
        A("s_mov_b64 exec, 1")
        for i,r in enumerate([44,46]+[68+2*k for k in range(16)]+[48,50,40,42]):
            A(f"v_mov_b32 v{t1}, s{r}")
            A(f"global_store_dword v{t0}, v{t1}, s[36:37] offset:{4*i}")
    if cfg.padk is not None:
        A("s_waitcnt vmcnt(0)")
        stamp(6)
        A("s_waitcnt lgkmcnt(0)")
        A(f"s_add_u32 s5, s{sT+2*cfg.padk}, 4000")
        A("L_spin:")
        A("s_memrealtime s[6:7]")
        A("s_waitcnt lgkmcnt(0)")
        A("s_sub_u32 s6, s6, s5")
        A("s_cmp_lt_i32 s6, 0")
        A("s_cbranch_scc1 L_spin")
    A("L_end:")
    A("s_endpgm")

    A("L_loader:")
    def ldsaddr(kind,h,c): return (KBASE+h*KHALF+1024*c-2048) if kind=="K" else (VBASE+h*VHALF+1024*c)
    def runs(kind,h,c0,c1): return [(kind,h,c,min(4,c1-c)) for c in range(c0,c1,4)]
    first=[("K",0,8,4),("V",0,8,4),("K",1,4,4),("V",1,4,4),("K",0,12,4),("V",0,12,4)]
    import itertools
    def interleave(*ls): return [x for tup in itertools.zip_longest(*ls) for x in tup if x]
    free=interleave(runs("K",0,16,38),runs("V",0,16,40),runs("K",1,8,40),runs("V",1,8,28))
    late=runs("K",0,38,40)+runs("V",1,28,40)
    n=0; done0=False; done1=False
    for (kind,h,c,cnt) in first+free+[None]+late if False else first+free:
        pass
    seq=first+free
    def emit(kind,h,c,cnt):
        A(f"s_mov_b32 m0, {ldsaddr(kind,h,c)}")
        A(f"s_mov_b32 s5, {h*VHALF+1024*c}")
        for i in range(cnt):
            A(f"buffer_load_dwordx4 v{vlane16}, {s(sK if kind=='K' else sV,4)}, s5 offen offset:{1024*i} lds")
    for r in seq:
        if not done0 and n>=cfg.e0:
            A("s_barrier                              ; b0"); done0=True
        if not done1 and n>=cfg.n1:
            A(f"s_waitcnt vmcnt({min(63,n-24)})")
            A("s_barrier                              ; b0'"); done1=True
        emit(*r); n+=r[3]
    assert done0
    if not done1:
        A(f"s_waitcnt vmcnt({min(63,n-24)})")
        A("s_barrier                              ; b0'")
    for r in late: emit(*r); n+=r[3]
    assert n==160-24
    A("s_waitcnt vmcnt(0)")
    A("s_barrier                              ; b1")
    A("s_endpgm")

    A("L_fallback:")
    A(f"s_cmp_lg_u32 s{sflag}, 0")
    A("s_cbranch_scc1 L_done")
    A(f"s_mov_b32 s{sflag}, 1")
    FS=S[1]; m=Oa; mn=Oa+1; al=Oa+2; fa=Oa+3; q8z=Oa+4; tm=Oa+6
    STG=KBASE+KHALF
    A(f"s_lshl_b32 s5, s{sw}, 11")
    A(f"s_add_u32 s5, s5, {STG}")
    A("s_mov_b32 m0, s5")
    A(f"s_mul_i32 s6, s{skh}, {VHALF}")
    A("s_sub_u32 s5, s5, s6")
    A(f"s_sub_u32 s5, s5, {VBASE}")
    A(f"v_and_b32 v{tm}, 19, v0")
    A(f"v_cmp_lt_u32 vcc, 16, v{tm}")
    A(f"v_add_u32 v{fa}, s5, v{av}")
    A("s_nop 0")
    A(f"v_cndmask_b32 v{fa}, v{fa}, v{av}, vcc")
    A("v_cmp_lt_u32 vcc, 31, v0")
    A("s_nop 1")
    A(f"v_cndmask_b32 v{q8z}, 0, v{Q8}, vcc")
    A(f"v_cndmask_b32 v{q8z+1}, 0, v{Q8+1}, vcc")
    A(f"v_mov_b32 v{m}, 0xff7fffff")
    for i in range(0,16,2): A(f"v_mov_b64 {v(Ob+i,2)}, 0")
    A("s_mov_b32 s5, 0")
    A("L_fb:")
    A(f"buffer_load_dwordx4 {v(K16[0],4)}, v{vq}, {s(sK,4)}, s5 offen")
    A(f"buffer_load_dwordx2 {v(K8[0],2)}, v{vq}, {s(sK,4)}, s5 offen offset:16")
    A(f"buffer_load_dwordx4 v{vlane16}, {s(sV,4)}, s5 offen lds")
    A("s_mov_b64 exec, 0xffff")
    A(f"buffer_load_dwordx4 v{vlane16}, {s(sV,4)}, s5 offen offset:1024 lds")
    A("s_mov_b64 exec, -1")
    A("s_waitcnt vmcnt(0)")
    for j,o in enumerate([0,160,640,800]): A(f"ds_read_b64_tr_b16 {v(V[0]+2*j,2)}, v{fa} offset:{o}")
    A(f"v_mfma_f32_32x32x8_bf16 {v(FS,16)}, {v(K8[0],2)}, {v(q8z,2)}, 0")
    A("s_nop 11")
    mf16(FS,K16[0],Qb16)
    A("s_nop 15")
    A(f"v_max3_f32 v{mn}, v{FS}, v{FS+1}, v{m}")
    for i in range(2,16,2): A(f"v_max3_f32 v{mn}, v{FS+i}, v{FS+i+1}, v{mn}")
    A(f"v_mov_b32 v{tm}, v{mn}")
    A("s_nop 1")
    A(f"v_permlane32_swap_b32 v{tm}, v{mn}")
    A("s_nop 1")
    A(f"v_max_f32 v{mn}, v{mn}, v{tm}")
    A(f"v_sub_f32 v{al}, v{m}, v{mn}")
    A(f"v_exp_f32 v{al}, v{al}")
    A(f"v_mov_b32 v{m}, v{mn}")
    for i in range(16): A(f"v_sub_f32 v{FS+i}, v{FS+i}, v{mn}")
    for i in range(16): A(f"v_exp_f32 v{FS+i}, v{FS+i}")
    for i in range(12): A(f"v_mul_f32 v{Ob+i}, v{Ob+i}, v{al}")
    A("s_waitcnt lgkmcnt(0)")
    A("s_nop 1")
    smf(Ob,V[0],FS)
    smf(Ob,V[0]+4,FS+8)
    A("s_addk_i32 s5, 1280")
    A(f"s_cmp_lt_u32 s5, {HEADB}")
    A("s_cbranch_scc1 L_fb")
    A("s_nop 15")
    for i in range(4): A(f"v_mov_b32 v{X+i}, v{Ob+i}")
    for i in range(4,12): A(f"v_mov_b32 v{X+i}, 0")
    A(f"v_mov_b32 v{X+13}, v{Ob+8}")
    A(f"v_mov_b32 v{lsum}, v{Ob+8}")
    A("s_nop 1")
    A("s_branch L_norm")
    hdr=f"""; fused attention forward, B=1 H=32 S=2048 Dh=20, bf16  (generated by gen/genY7.py)
; @launch grid=(256,1,1) block=(576,1,1) lds=163840
.amdgcn_target "amdgcn-amd-amdhsa--gfx950"
.text
.globl {NAME}_kernel
.p2align 8
.type {NAME}_kernel,@function
{NAME}_kernel:
"""
    nv=(NV+7)//8*8
    ftr=f""".section .rodata,"a"
.p2align 6
.amdhsa_kernel {NAME}_kernel
  .amdhsa_next_free_vgpr {nv}
  .amdhsa_next_free_sgpr {102 if (cfg.prof or cfg.stamps or cfg.padk is not None) else 40}
  .amdhsa_accum_offset {nv}
  .amdhsa_group_segment_fixed_size 0
  .amdhsa_kernarg_size 48
  .amdhsa_user_sgpr_count 2
  .amdhsa_user_sgpr_kernarg_segment_ptr 1
  .amdhsa_system_sgpr_workgroup_id_x 1
.end_amdhsa_kernel
"""
    body="\n".join((x if x.endswith(":") else "    "+x) for x in L)
    return hdr+body+"\n"+ftr
if __name__=="__main__":
    cfg=Cfg()
    out=sys.argv[1]
    for a in sys.argv[2:]:
        k,val=a.split("=",1)
        assert hasattr(cfg,k),k
        setattr(cfg,k,eval(val))
    open(out,"w").write(gen(cfg))
```

```python
import sys, math, struct
NAME="standalone__fused_io_aware_attn__prompt"
def f32bits(x): return struct.unpack("<I",struct.pack("<f",x))[0]
def v(b,n=1): return f"v[{b}:{b+n-1}]" if n>1 else f"v{b}"
def s(b,n=1): return f"s[{b}:{b+n-1}]" if n>1 else f"s{b}"

class Cfg:
    e0=0
    n1=88
    abar0=4; bbar0=1
    abar=10; bbar=2
    prio={26:2,30:1,31:0}
    prio0=3
    stamps=False
    prof=False
    G=3
    padk=None
    store_mod="sc1"
    pat=[3,9,8,3,3,3,3]
    lds={(1,3):['W','K','V']}
    bdelay=0
    earlybar=True
    force_fb=False
    cbias="4.0"
    xtail=True
    xbarpos=0
    qprio=False
    k8oob=True
    chklate=True
    barpos=None
    obias=None
    obias_all=False

def gen(cfg):
    L=[]
    A=L.append
    HEADB=81920
    VBASE=4096; VHALF=40960; KBASE=VBASE+2*VHALF; KHALF=38912
    QST=VBASE+VHALF+28*1024
    G=cfg.G
    NAV=(32+G-1)//G
    idx=1; ak=2; t0=3; t1=4; t2=5; vlane16=6; vq=7
    Qa16=8; Qb16=12; Q8=16; t3=18; t4=19
    K16=[20,28]; K8=[24,32]
    ak8=26 if cfg.k8oob else ak
    akx=27; ako=34; akxo=35; avo=18
    V=[36,44]
    Oa=52; Ob=68
    S=[84,116]
    av=148
    NV=av+NAV
    sQ=8; sK=12; sV=16; sO=20; sD=28
    sw=24; sj=25; skh=26; sqb=27; sflag=34
    sT=40
    def stamp(k):
        if cfg.stamps or cfg.padk is not None:
            A(f"s_memrealtime {s(sT+2*k,2)}")
    def prof(r):
        if cfg.prof: A(f"s_memtime s[{r}:{r+1}]")
    def smf(O,Aa,B): A(f"v_smfmac_f32_32x32x32_bf16 {v(O,16)}, {v(Aa,4)}, {v(B,8)}, v{idx}")
    def mf16(D,Aa,B): A(f"v_mfma_f32_32x32x16_bf16 {v(D,16)}, {v(Aa,4)}, {v(B,4)}, {v(D,16)}")
    def mf2b(D,Aa,B): A(f"v_mfma_f32_32x32x4_2b_bf16 {v(D,32)}, {v(Aa,2)}, {v(B,2)}, {cfg.cbias} cbsz:1 abid:1")
    def mf2x(D,Aa,B): A(f"v_mfma_f32_32x32x4_2b_bf16 {v(D,32)}, {v(Aa,2)}, {v(B,2)}, {cfg.cbias} blgp:2")
    def rdV(t,dst,rng=(0,4),areg=None):
        for j,o in list(enumerate([0,160,640,800]))[rng[0]:rng[1]]:
            A(f"ds_read_b64_tr_b16 {v(dst+2*j,2)}, v{areg or av+t//G} offset:{(t%G)*1280+o}")
    def rdK16(t,p,areg):
        A(f"ds_read_b64 {v(K16[p],2)}, v{areg} offset:{1280*t}")
        A(f"ds_read_b64 {v(K16[p]+2,2)}, v{areg} offset:{1280*t+8}")
    def rdK(t,p):
        A(f"ds_read_b64 {v(K16[p],2)}, v{ak} offset:{1280*t}")
        A(f"ds_read_b64 {v(K16[p]+2,2)}, v{ak} offset:{1280*t+8}")
        A(f"ds_read_b64 {v(K8[p],2)}, v{ak8} offset:{1280*t+16}")
    assert (cfg.abar0+2)*1280 <= 8*1024 and (cfg.bbar0+2)*1280 <= 4*1024
    assert (cfg.abar+2)*1280 <= 16*1024 and (cfg.bbar+2)*1280 <= 8*1024
    assert (cfg.abar+2)*1280-2048 >= 12288 and (cfg.abar+1)*1280 >= 12288
    assert cfg.abar0<cfg.abar and cfg.bbar0<cfg.bbar
    cs=math.log2(math.e)/math.sqrt(20.0)

    stamp(0)
    A("s_load_dwordx4 s[8:11], s[0:1], 0      ; q, k")
    A("s_load_dwordx4 s[16:19], s[0:1], 16    ; v, out")
    if cfg.stamps: A("s_load_dwordx2 s[36:37], s[0:1], 40    ; ws")
    A("s_cmp_ge_u32 s2, 256")
    A("s_cbranch_scc1 L_end")
    A("s_getpc_b64 s[6:7]")
    A(f"v_mul_u32_u24 v{t1}, 20, v0")
    A(f"global_load_dword v{S[1]+8}, v{t1}, s[6:7]")
    A(f"v_lshrrev_b32 v{t0}, 6, v0")
    A("v_and_b32 v0, 63, v0                   ; lane")
    A(f"v_readfirstlane_b32 s{sw}, v{t0}")
    A(f"v_lshlrev_b32 v{vlane16}, 4, v0")
    A(f"v_lshlrev_b32 v{t2}, 2, v0")
    A("s_and_b32 s3, s2, 7")
    A("s_lshr_b32 s4, s2, 6")
    A("s_lshl_b32 s4, s4, 3")
    A("s_add_u32 s3, s3, s4                   ; head")
    A(f"s_mul_i32 s3, s3, {HEADB}")
    A("s_bfe_u32 s4, s2, 0x30003")
    A("s_mul_i32 s4, s4, 10240")
    A(f"s_mul_i32 s33, s{sw}, 1280")
    A("s_add_u32 s35, s4, s33")
    A(f"s_and_b32 s32, s{sw}, 1")
    A(f"s_cselect_b32 s5, 0, {KBASE-2048-VBASE}")
    A(f"s_cselect_b32 s7, 2048, 0")
    A(f"s_addk_i32 s5, {VBASE}")
    A(f"s_lshr_b32 s6, s{sw}, 1")
    A("s_lshl_b32 s38, s6, 11")
    A("s_add_u32 m0, s5, s38")
    A("s_lshl_b32 s39, s6, 10")
    A("s_add_u32 s5, s5, s7")
    A("s_add_u32 s5, s5, s39")
    A(f"s_add_u32 s5, s5, {KHALF}")
    A(f"s_add_u32 s39, s39, {VHALF}")
    A(f"s_mov_b32 s14, {HEADB}")
    A("s_mov_b32 s15, 0x20000")
    A(f"s_mov_b32 s30, {HEADB}")
    A("s_mov_b32 s31, 0x20000")
    if cfg.qprio: A("s_setprio 1")
    A("s_waitcnt lgkmcnt(0)")
    stamp(1)
    A("s_add_u32 s12, s10, s3")
    A("s_addc_u32 s13, s11, 0")
    A("s_add_u32 s20, s18, s3")
    A("s_addc_u32 s21, s19, 0")
    A("s_add_u32 s16, s16, s3")
    A("s_addc_u32 s17, s17, 0")
    A(f"s_mov_b32 s18, {HEADB}")
    A("s_mov_b32 s19, 0x20000")
    A(f"s_cmp_eq_u32 s{sw}, 8")
    A("s_cbranch_scc1 L_loader")
    A("s_add_u32 s8, s8, s3")
    A("s_addc_u32 s9, s9, 0")
    A(f"s_mov_b32 s10, {HEADB}")
    A("s_mov_b32 s11, 0x20000")
    QR=S[0]+8
    A(f"buffer_load_dwordx4 {v(QR,4)}, v{vlane16}, {s(sQ,4)}, s35 offen")
    A(f"buffer_load_dword v{QR+4}, v{t2}, {s(sQ,4)}, s35 offen offset:1024")
    if cfg.qprio: A("s_setprio 0")
    A("s_cmp_eq_u32 s32, 1")
    A("s_cselect_b32 s28, s16, s12")
    A("s_cselect_b32 s29, s17, s13")
    A(f"buffer_load_dwordx4 v{vlane16}, {s(sD,4)}, s38 offen lds")
    A(f"buffer_load_dwordx4 v{vlane16}, {s(sD,4)}, s38 offen offset:1024 lds")
    A("s_mov_b32 m0, s5")
    A(f"s_lshr_b32 s{skh}, s{sw}, 2")
    A(f"buffer_load_dwordx4 v{vlane16}, {s(sD,4)}, s39 offen lds")
    stamp(2)
    qa=V[1]; qb=V[1]+1; q8=V[1]+2; qw=V[1]+3; qw2=V[1]+4
    A(f"s_mov_b32 s22, {HEADB}")
    A("s_mov_b32 s23, 0x20000")
    A(f"s_and_b32 s{sj}, s{sw}, 3")
    A(f"s_mov_b32 s{sflag}, 0")
    A(f"s_add_u32 s33, s33, {QST}")
    A(f"v_add_u32 v{qw}, s33, v{vlane16}")
    A(f"v_add_u32 v{qw2}, s33, v{t2}")
    A(f"s_lshl_b32 s5, s{sw}, 9")
    A(f"v_lshl_add_u32 v{S[1]}, v0, 3, s5")
    A(f"v_mov_b32 v{S[1]+2}, 0x3f80")
    A(f"v_mov_b32 v{S[1]+3}, 0")
    A(f"ds_write_b64 v{S[1]}, {v(S[1]+2,2)}")
    A(f"v_and_b32 v{t0}, 31, v0")
    A(f"v_lshrrev_b32 v{t1}, 5, v0            ; h")
    A(f"v_mul_u32_u24 v{t2}, 40, v{t0}")
    A(f"v_lshl_add_u32 v{vq}, v{t1}, 4, v{t2}  ; row*40 + 16h")
    A(f"s_mul_i32 s5, s{sj}, 2560")
    A(f"s_mul_i32 s6, s{skh}, 1280")
    A("s_add_u32 s7, s5, s6")
    A(f"s_add_u32 s{sqb}, s4, s7")
    A(f"s_add_u32 s7, s7, {QST}")
    A(f"v_add_u32 v{qb}, s7, v{vq}")
    A("s_sub_u32 s7, s5, s6")
    A(f"s_add_u32 s7, s7, {QST+1280}")
    A(f"v_add_u32 v{qa}, s7, v{vq}")
    A(f"v_xor_b32 v{t3}, s{skh}, v{t1}")
    A(f"v_xor_b32 v{t3}, 1, v{t3}")
    A(f"v_mul_u32_u24 v{t3}, 0x500, v{t3}")
    A(f"s_add_u32 s5, s5, {QST+32}")
    A(f"v_add3_u32 v{q8}, v{t3}, v{t2}, s5")
    A(f"s_mul_i32 s5, s{skh}, {KHALF}")
    A(f"s_add_u32 s5, s5, {KBASE-2048}")
    A(f"v_add_u32 v{ak}, s5, v{vq}")
    if cfg.k8oob:
        A(f"v_mov_b32 v{ak8}, v{ak}")
        A("s_mov_b32 exec_hi, 0")
        A(f"v_mov_b32 v{ak8}, 0x40000")
        A("s_mov_b64 exec, -1")
    A(f"v_bfe_u32 v{t0}, v0, 2, 2             ; r")
    A(f"v_lshl_add_u32 v{t0}, v{t1}, 3, v{t0}")
    A(f"v_mul_u32_u24 v{t0}, 40, v{t0}")
    A(f"v_and_b32 v{t2}, 1, v0")
    A(f"v_lshl_add_u32 v{t0}, v{t2}, 4, v{t0}  ; + 16*(c&1)")
    A(f"v_bfe_u32 v{t2}, v0, 1, 1")
    A(f"v_lshl_add_u32 v{t0}, v{t2}, 3, v{t0}  ; + 8*(c>>1)")
    A(f"v_bfe_u32 v{t2}, v0, 4, 1")
    A(f"v_lshl_add_u32 v{t0}, v{t2}, 5, v{t0}  ; + 32*g")
    A(f"s_mul_i32 s5, s{skh}, {VHALF}")
    A(f"s_addk_i32 s5, {VBASE}")
    A(f"v_add_u32 v{t0}, s5, v{t0}")
    A(f"v_and_b32 v{t2}, 19, v0               ; g*16 + c")
    A(f"v_cmp_lt_u32 vcc, 16, v{t2}")
    A(f"v_cmp_eq_u32 s[6:7], 17, v{t2}")
    A(f"v_mov_b32 v{S[1]+4}, 0x40000")
    A(f"v_mov_b32 v{S[1]+5}, 224")
    A(f"v_cndmask_b32 v{S[1]+4}, v{S[1]+4}, v{S[1]+5}, s[6:7]")
    A(f"v_mov_b32 v{S[1]+5}, {G*1280}")
    A(f"v_cndmask_b32 v{av}, v{t0}, v{S[1]+4}, vcc")
    A(f"v_cndmask_b32 v{S[1]+5}, v{S[1]+5}, 0, vcc")
    A(f"v_mov_b32 v{idx}, 0xdddddddd")
    for i in range(1,NAV): A(f"v_add_u32 v{av+i}, v{av+i-1}, v{S[1]+5}")
    if cfg.xtail:
        assert 30//G==31//G
        A(f"s_lshl_b32 s5, s{skh}, 1")
        A("s_sub_u32 s5, 1, s5")
        A(f"s_mul_i32 s6, s5, {KHALF}")
        A(f"s_mul_i32 s7, s5, {VHALF}")
        A(f"v_add_u32 v{ako}, s6, v{ak}")
        A(f"v_mul_u32_u24 v{akx}, {1280-16}, v{t1}")
        A(f"v_add3_u32 v{akx}, v{akx}, v{ak}, 32    ; lane*40 + 32")
        A(f"v_add_u32 v{akxo}, s6, v{akx}")
        A(f"v_mov_b32 v{avo}, s7")
        A(f"v_cndmask_b32 v{avo}, v{avo}, 0, vcc")
        A(f"v_add_u32 v{avo}, v{avo}, v{av+30//G}")
    for i in range(0,32,2): A(f"v_mov_b64 {v(Oa+i,2)}, 0")
    if cfg.obias is not None:
        for o in (Oa,Ob):
            for i in range(8): A(f"v_mov_b32 v{o+i}, {f32bits(cfg.obias):#x}")
            if cfg.obias_all:
                for i in range(8,16): A(f"v_mov_b32 v{o+i}, {f32bits(cfg.obias):#x}")
            else:
                A("s_mov_b32 exec_hi, 0")
                for i in range(8,12): A(f"v_mov_b32 v{o+i}, {f32bits(cfg.obias):#x}")
                A("s_mov_b64 exec, -1")
    A(f"s_mul_i32 s5, s{sj}, 3072")
    A(f"s_add_u32 s6, s5, {KBASE}")
    A(f"s_add_u32 s7, s5, {VBASE}")
    A(f"s_cmp_eq_u32 s{skh}, 1")
    A("s_cselect_b32 s38, s6, s7")
    A("s_cselect_b32 s39, s7, s6")
    A(f"s_mov_b32 s6, {f32bits(cs):#x}          ; log2(e)/sqrt(20)")
    A("s_mov_b32 s7, s6")
    T=S[0]+16
    A("s_waitcnt vmcnt(3)")
    for i in range(5):
        A(f"v_lshlrev_b32 v{T+2*i}, 16, v{QR+i}")
        A(f"v_and_b32 v{T+2*i+1}, 0xffff0000, v{QR+i}")
    for i in range(5): A(f"v_pk_mul_f32 {v(T+2*i,2)}, {v(T+2*i,2)}, s[6:7]")
    for i in range(5): A(f"v_cvt_pk_bf16_f32 v{QR+i}, v{T+2*i}, v{T+2*i+1}")
    A(f"ds_write_b128 v{qw}, {v(QR,4)}")
    A(f"ds_write_b32 v{qw2}, v{QR+4} offset:1024")
    A(f"s_setprio {cfg.prio0}")
    A("s_waitcnt vmcnt(0) lgkmcnt(0)")
    A("s_barrier")
    stamp(3); prof(44)
    A(f"ds_read_b64 {v(K8[0],2)}, v{ak8} offset:16")
    A(f"ds_read_b64 {v(Q8,2)}, v{q8}")
    A(f"ds_read_b64 {v(K16[0],2)}, v{ak}")
    A(f"ds_read_b64 {v(K16[0]+2,2)}, v{ak} offset:8")
    A(f"ds_read_b64 {v(Qa16,2)}, v{qa}")
    A(f"ds_read_b64 {v(Qa16+2,2)}, v{qa} offset:8")
    A(f"ds_read_b64 {v(Qb16,2)}, v{qb}")
    A(f"ds_read_b64 {v(Qb16+2,2)}, v{qb} offset:8")
    if cfg.bdelay:
        A("s_cbranch_scc0 L_nd")
        for i in range(cfg.bdelay): A("s_nop 15")
        A("L_nd:")
    A("s_waitcnt lgkmcnt(6)")
    mf2b(S[0],K8[0],Q8)
    rdK(1,1)
    rdV(0,V[0])
    A("s_nop 9")
    A("s_waitcnt lgkmcnt(7)")
    mf16(S[0],K16[0],Qa16)
    stamp(4); prof(46)
    if cfg.stamps: A("s_memtime s[64:65]")
    A("s_nop 10")
    XW=t0; XR=t1
    X=Oa if cfg.xtail else S[0]
    A("L_loop:")
    for t in range(32):
        p=t&1;q=p^1
        Sa=S[p];Sb=Sa+16;Na=S[q];Nb=Na+16
        def W():
            A("s_waitcnt lgkmcnt(0)")
            if cfg.prof and t%2==0: A(f"s_memtime s[{68+t}:{69+t}]")
            if t in cfg.prio: A(f"s_setprio {cfg.prio[t]}")
            for (st,cond,nm,k) in ((cfg.abar0,1,"a0",9),(cfg.bbar0,0,"b0",9),(cfg.abar,1,"a1",7),(cfg.bbar,0,"b1",7)):
                if t==st:
                    A(f"s_cbranch_scc{cond} L_n{nm}")
                    stamp(k)
                    A("s_barrier")
                    stamp(k+1)
                    A(f"L_n{nm}:")
        def grp(g):
            if g=="W": W()
            if g=="K" and cfg.xtail and t>=28:
                rdK16(t+2,p,ak)
                A(f"ds_read_b64 {v(K8[p],2)}, v{akx if t==28 else akxo} offset:{1280*30}")
            elif g=="K" and t+2<32: rdK(t+2,p)
            if g[0]=="V" and t+1<32: rdV(t+1,V[q],{"V":(0,4),"V0":(0,2),"V1":(2,4)}[g])
        def ex(lo,hi):
            for e in range(lo,hi): A(f"v_exp_f32 v{Sa+e}, v{Sa+e}")
        if t<(30 if cfg.xtail else 31):
            xt=cfg.xtail and t==29
            M=[lambda:mf16(Sb,K16[p],Qb16),
               (lambda:smf(Ob,V[q]+4,Nb+8)) if t>0 else None,
               (lambda:mf2x(Na,K8[q],Q8)) if xt else (lambda:mf2b(Na,K8[q],Q8)),
               lambda:smf(Oa,V[p],Sa),
               lambda:smf(Oa,V[p]+4,Sa+8),
               lambda:mf16(Na,K16[q],Qb16 if xt else Qa16),
               lambda:smf(Ob,V[p],Sb)]
            pat=cfg.pat
            cc=[sum(pat[:i]) for i in range(8)]
            assert cc[7]==32 and cc[3]>=10 and cc[4]>=18 and cc[6]>=26 and pat[0]>=1
            e=0
            for i in range(7):
                if M[i]: M[i]()
                for k in range(pat[i]+1):
                    isb=t in (cfg.abar0,cfg.bbar0,cfg.abar,cfg.bbar) and cfg.barpos is not None
                    if isb and (i,k)==cfg.barpos: grp("W")
                    for g in cfg.lds.get((i,k),[]):
                        if not (isb and g=="W"): grp(g)
                    if k<pat[i]:
                        ex(e,e+1); e+=1
            if xt:
                assert sum(pat[4:])>=6
                A(f"v_add_u32 v{XW}, s38, v{vlane16}")
                for k in range(3): A(f"ds_write_b128 v{XW}, {v(Oa+4*k,4)} offset:{1024*k}")
        elif cfg.xtail:
            def xch():
                A("s_barrier")
                prof(50)
                for i in (2,0,1): A(f"ds_read_b128 {v(X+4*i,4)}, v{XR} offset:{1024*i}")
            if t==30:
                A("s_waitcnt lgkmcnt(3)")
                if cfg.prof: A(f"s_memtime s[{68+t}:{69+t}]")
                if t in cfg.prio: A(f"s_setprio {cfg.prio[t]}")
                mf16(Sb,K16[1],Qb16); ex(0,3)
                smf(Ob,V[1]+4,Nb+8); ex(3,6)
                rdK16(30,0,ako); rdV(31,V[1]); rdK16(31,1,ako)
                ex(6,12)
                mf2x(Na,K8[1],Q8); ex(12,20)
                smf(Ob,V[0],Sa); ex(20,23)
                smf(Ob,V[0]+4,Sa+8); ex(23,26)
                A("s_waitcnt lgkmcnt(0)")
                rdV(30,V[0],areg=avo)
                mf16(Na,K16[0],Qb16); ex(26,29)
                smf(Ob,V[1],Sb); ex(29,32)
                A(f"v_add_u32 v{XR}, s39, v{vlane16}")
            else:
                if t in cfg.prio: A(f"s_setprio {cfg.prio[t]}")
                if cfg.xbarpos==0: xch()
                mf16(Sb,K16[1],Qb16); ex(0,3)
                smf(Ob,V[1]+4,Nb+8); ex(3,6)
                rdV(31,V[1],areg=avo)
                ex(6,10)
                A(f"s_waitcnt lgkmcnt({7 if cfg.xbarpos==0 else 4})")
                smf(Ob,V[0],Sa); ex(10,18)
                if cfg.xbarpos==1: xch()
                smf(Ob,V[0]+4,Sa+8); ex(18,26)
                A(f"s_waitcnt lgkmcnt({0 if cfg.xbarpos==0 else 3})")
                smf(Ob,V[1],Sb); ex(26,32)
                A("s_nop 1")
                smf(Ob,V[1]+4,Sb+8)
        else:
            mf16(Sb,K16[p],Qb16); ex(0,3)
            smf(Ob,V[q]+4,Nb+8); ex(3,6)
            W()
            ex(6,10)
            smf(Oa,V[p],Sa); ex(10,18)
            smf(Oa,V[p]+4,Sa+8); ex(18,23)
            A(f"v_add_u32 v{XW}, s38, v{vlane16}")
            A(f"v_add_u32 v{XR}, s39, v{vlane16}")
            ex(23,24)
            for k in range(3): A(f"ds_write_b128 v{XW}, {v(Oa+4*k,4)} offset:{1024*k}")
            ex(24,26)
            smf(Ob,V[p],Sb)
            if cfg.earlybar:
                ex(26,28)
                A("s_waitcnt lgkmcnt(0)")
                A("s_barrier")
                prof(50)
                for i in (2,0,1): A(f"ds_read_b128 {v(X+4*i,4)}, v{XR} offset:{1024*i}")
                ex(28,32)
            else: ex(26,32)
            A("s_nop 1")
            smf(Ob,V[p]+4,Sb+8)
    stamp(5); prof(48)
    if cfg.stamps: A("s_memtime s[66:67]")
    if not cfg.earlybar:
        A("s_waitcnt lgkmcnt(0)")
        A("s_barrier")
        prof(50)
        for i in (2,0,1): A(f"ds_read_b128 {v(X+4*i,4)}, v{XR} offset:{1024*i}")
        A(f"v_add_u32 v{XW}, s39, v{vq}")
        A("s_nop 5")
    else:
        A(f"v_add_u32 v{XW}, s39, v{vq}")
        A("s_nop 9")
    A("s_waitcnt lgkmcnt(0)")
    lsum=X+12
    A(f"v_add_f32 v{X+13}, v{Ob+8}, v{X+8}")
    A(f"v_add_f32 v{lsum}, v{Ob+8}, v{X+8}")
    for i in (0,2): A(f"v_pk_add_f32 {v(X+i,2)}, {v(Ob+i,2)}, {v(X+i,2)}")
    A("L_norm:")
    A(f"v_permlane32_swap_b32 v{X+13}, v{lsum}")
    for i in (4,6): A(f"v_pk_add_f32 {v(X+i,2)}, {v(Ob+i,2)}, {v(X+i,2)}")
    A(f"v_rcp_f32 v{X+14}, v{lsum}")
    for i in (8,10): A(f"v_pk_add_f32 {v(X+i,2)}, {v(Ob+i,2)}, {v(X+i,2)}")
    P=S[0]+16; R=S[0]+24
    for i in range(0,8,2):
        A(f"v_pk_mul_f32 {v(X+i,2)}, {v(X+i,2)}, {v(X+14,2)} op_sel_hi:[1,0]")
    for i in range(4): A(f"v_cvt_pk_bf16_f32 v{P+i}, v{X+2*i}, v{X+2*i+1}")
    A(f"ds_write2_b64 v{XW}, {v(P,2)}, {v(P+2,2)} offset0:0 offset1:1")
    for i in range(8,12,2):
        A(f"v_pk_mul_f32 {v(X+i,2)}, {v(X+i,2)}, {v(X+14,2)} op_sel_hi:[1,0]")
    for i in range(4,6): A(f"v_cvt_pk_bf16_f32 v{P+i}, v{X+2*i}, v{X+2*i+1}")
    A("s_mov_b32 exec_hi, 0")
    A(f"ds_write_b64 v{XW}, {v(P+4,2)} offset:32")
    A("s_mov_b64 exec, -1")
    A(f"ds_read_b128 {v(R,4)}, v{XR}")
    A(f"ds_read_b128 {v(R+4,4)}, v{XR} offset:1024")
    def chk():
        for i in (0,4,8): A(f"v_pk_add_f32 {v(X+i,2)}, {v(X+i,2)}, {v(X+i+2,2)}")
        A(f"v_cmp_nle_f32 vcc, 1.0, v{lsum}")
        A(f"v_pk_add_f32 {v(X,2)}, {v(X,2)}, {v(X+4,2)}")
        A(f"s_mov_b32 s5, {f32bits(2.0**100):#x}")
        A(f"v_pk_add_f32 {v(X,2)}, {v(X,2)}, {v(X+8,2)}")
        A(f"v_cmp_ngt_f32 s[6:7], s5, v{lsum}")
        A(f"v_add_f32 v{X}, v{X}, v{X+1}")
        A("s_or_b64 s[6:7], s[6:7], vcc")
        A("s_movk_i32 s5, 0x207")
        A(f"v_cmp_class_f32 vcc, v{X}, s5")
    if not cfg.chklate: chk()
    A("s_waitcnt lgkmcnt(1)")
    A(f"buffer_store_dwordx4 {v(R,4)}, v{vlane16}, {s(sO,4)}, s{sqb} offen {cfg.store_mod}")
    A("s_mov_b64 exec, 0xffff")
    A("s_waitcnt lgkmcnt(0)")
    A(f"buffer_store_dwordx4 {v(R+4,4)}, v{vlane16}, {s(sO,4)}, s{sqb} offen offset:1024 {cfg.store_mod}")
    A("s_mov_b64 exec, -1")
    if cfg.chklate: chk()
    A("s_or_b64 s[6:7], s[6:7], vcc")
    if cfg.force_fb: A("s_cmp_eq_u32 s2, s2")
    A("s_cbranch_scc1 L_fallback")
    A("L_done:")
    if cfg.stamps:
        A("s_waitcnt vmcnt(0)")
        stamp(6)
        A("s_waitcnt lgkmcnt(0)")
        A(f"s_lshl_b32 s5, s2, 3")
        A(f"s_add_u32 s5, s5, s{sw}")
        A(f"s_lshl_b32 s5, s5, 6")
        A(f"v_mov_b32 v{t0}, s5")
        A("s_mov_b64 exec, 1")
        A("s_sub_u32 s66, s66, s64")
        A(f"v_mov_b32 v{t1}, s66")
        A(f"global_store_dword v{t0}, v{t1}, s[36:37] offset:60")
        for i in range(11):
            A(f"v_mov_b32 v{t1}, s{sT+2*i}")
            A(f"global_store_dword v{t0}, v{t1}, s[36:37] offset:{4*i}")
    if cfg.prof:
        A("s_load_dwordx2 s[36:37], s[0:1], 40")
        A("s_memtime s[40:41]")
        A("s_waitcnt vmcnt(0)")
        A("s_memtime s[42:43]")
        A("s_waitcnt lgkmcnt(0)")
        A(f"s_lshl_b32 s5, s2, 3")
        A(f"s_add_u32 s5, s5, s{sw}")
        A(f"s_lshl_b32 s5, s5, 7")
        A(f"v_mov_b32 v{t0}, s5")
        A("s_mov_b64 exec, 1")
        for i,r in enumerate([44,46]+[68+2*k for k in range(16)]+[48,50,40,42]):
            A(f"v_mov_b32 v{t1}, s{r}")
            A(f"global_store_dword v{t0}, v{t1}, s[36:37] offset:{4*i}")
    if cfg.padk is not None:
        A("s_waitcnt vmcnt(0)")
        stamp(6)
        A("s_waitcnt lgkmcnt(0)")
        A(f"s_add_u32 s5, s{sT+2*cfg.padk}, 4000")
        A("L_spin:")
        A("s_memrealtime s[6:7]")
        A("s_waitcnt lgkmcnt(0)")
        A("s_sub_u32 s6, s6, s5")
        A("s_cmp_lt_i32 s6, 0")
        A("s_cbranch_scc1 L_spin")
    A("L_end:")
    A("s_endpgm")

    A("L_loader:")
    def ldsaddr(kind,h,c): return (KBASE+h*KHALF+1024*c-2048) if kind=="K" else (VBASE+h*VHALF+1024*c)
    def runs(kind,h,c0,c1): return [(kind,h,c,min(4,c1-c)) for c in range(c0,c1,4)]
    first=[("K",0,8,4),("V",0,8,4),("K",1,4,4),("V",1,4,4),("K",0,12,4),("V",0,12,4)]
    import itertools
    def interleave(*ls): return [x for tup in itertools.zip_longest(*ls) for x in tup if x]
    free=interleave(runs("K",0,16,38),runs("V",0,16,40),runs("K",1,8,40),runs("V",1,8,28))
    late=runs("K",0,38,40)+runs("V",1,28,40)
    n=0; done0=False; done1=False
    for (kind,h,c,cnt) in first+free+[None]+late if False else first+free:
        pass
    seq=first+free
    def emit(kind,h,c,cnt):
        A(f"s_mov_b32 m0, {ldsaddr(kind,h,c)}")
        A(f"s_mov_b32 s5, {h*VHALF+1024*c}")
        for i in range(cnt):
            A(f"buffer_load_dwordx4 v{vlane16}, {s(sK if kind=='K' else sV,4)}, s5 offen offset:{1024*i} lds")
    for r in seq:
        if not done0 and n>=cfg.e0:
            A("s_barrier                              ; b0"); done0=True
        if not done1 and n>=cfg.n1:
            A(f"s_waitcnt vmcnt({min(63,n-24)})")
            A("s_barrier                              ; b0'"); done1=True
        emit(*r); n+=r[3]
    assert done0
    if not done1:
        A(f"s_waitcnt vmcnt({min(63,n-24)})")
        A("s_barrier                              ; b0'")
    for r in late: emit(*r); n+=r[3]
    assert n==160-24
    A("s_waitcnt vmcnt(0)")
    A("s_barrier                              ; b1")
    A("s_endpgm")

    A("L_fallback:")
    A(f"s_cmp_lg_u32 s{sflag}, 0")
    A("s_cbranch_scc1 L_done")
    A(f"s_mov_b32 s{sflag}, 1")
    FS=S[1]; m=Oa; mn=Oa+1; al=Oa+2; fa=Oa+3; q8z=Oa+4; tm=Oa+6
    STG=KBASE+KHALF
    A(f"s_lshl_b32 s5, s{sw}, 11")
    A(f"s_add_u32 s5, s5, {STG}")
    A("s_mov_b32 m0, s5")
    A(f"s_mul_i32 s6, s{skh}, {VHALF}")
    A("s_sub_u32 s5, s5, s6")
    A(f"s_sub_u32 s5, s5, {VBASE}")
    A(f"v_and_b32 v{tm}, 19, v0")
    A(f"v_cmp_lt_u32 vcc, 16, v{tm}")
    A(f"v_add_u32 v{fa}, s5, v{av}")
    A("s_nop 0")
    A(f"v_cndmask_b32 v{fa}, v{fa}, v{av}, vcc")
    A("v_cmp_lt_u32 vcc, 31, v0")
    A("s_nop 1")
    A(f"v_cndmask_b32 v{q8z}, 0, v{Q8}, vcc")
    A(f"v_cndmask_b32 v{q8z+1}, 0, v{Q8+1}, vcc")
    A(f"v_mov_b32 v{m}, 0xff7fffff")
    for i in range(0,16,2): A(f"v_mov_b64 {v(Ob+i,2)}, 0")
    A("s_mov_b32 s5, 0")
    A("L_fb:")
    A(f"buffer_load_dwordx4 {v(K16[0],4)}, v{vq}, {s(sK,4)}, s5 offen")
    A(f"buffer_load_dwordx2 {v(K8[0],2)}, v{vq}, {s(sK,4)}, s5 offen offset:16")
    A(f"buffer_load_dwordx4 v{vlane16}, {s(sV,4)}, s5 offen lds")
    A("s_mov_b64 exec, 0xffff")
    A(f"buffer_load_dwordx4 v{vlane16}, {s(sV,4)}, s5 offen offset:1024 lds")
    A("s_mov_b64 exec, -1")
    A("s_waitcnt vmcnt(0)")
    for j,o in enumerate([0,160,640,800]): A(f"ds_read_b64_tr_b16 {v(V[0]+2*j,2)}, v{fa} offset:{o}")
    A(f"v_mfma_f32_32x32x8_bf16 {v(FS,16)}, {v(K8[0],2)}, {v(q8z,2)}, 0")
    A("s_nop 11")
    mf16(FS,K16[0],Qb16)
    A("s_nop 15")
    A(f"v_max3_f32 v{mn}, v{FS}, v{FS+1}, v{m}")
    for i in range(2,16,2): A(f"v_max3_f32 v{mn}, v{FS+i}, v{FS+i+1}, v{mn}")
    A(f"v_mov_b32 v{tm}, v{mn}")
    A("s_nop 1")
    A(f"v_permlane32_swap_b32 v{tm}, v{mn}")
    A("s_nop 1")
    A(f"v_max_f32 v{mn}, v{mn}, v{tm}")
    A(f"v_sub_f32 v{al}, v{m}, v{mn}")
    A(f"v_exp_f32 v{al}, v{al}")
    A(f"v_mov_b32 v{m}, v{mn}")
    for i in range(16): A(f"v_sub_f32 v{FS+i}, v{FS+i}, v{mn}")
    for i in range(16): A(f"v_exp_f32 v{FS+i}, v{FS+i}")
    for i in range(12): A(f"v_mul_f32 v{Ob+i}, v{Ob+i}, v{al}")
    A("s_waitcnt lgkmcnt(0)")
    A("s_nop 1")
    smf(Ob,V[0],FS)
    smf(Ob,V[0]+4,FS+8)
    A("s_addk_i32 s5, 1280")
    A(f"s_cmp_lt_u32 s5, {HEADB}")
    A("s_cbranch_scc1 L_fb")
    A("s_nop 15")
    for i in range(4): A(f"v_mov_b32 v{X+i}, v{Ob+i}")
    for i in range(4,12): A(f"v_mov_b32 v{X+i}, 0")
    A(f"v_mov_b32 v{X+13}, v{Ob+8}")
    A(f"v_mov_b32 v{lsum}, v{Ob+8}")
    A("s_nop 1")
    A("s_branch L_norm")
    hdr=f"""; fused attention forward, B=1 H=32 S=2048 Dh=20, bf16  (generated by gen/genY9.py)
; @launch grid=(256,1,1) block=(576,1,1) lds=163840
.amdgcn_target "amdgcn-amd-amdhsa--gfx950"
.text
.globl {NAME}_kernel
.p2align 8
.type {NAME}_kernel,@function
{NAME}_kernel:
"""
    nv=(NV+7)//8*8
    ftr=f""".section .rodata,"a"
.p2align 6
.amdhsa_kernel {NAME}_kernel
  .amdhsa_next_free_vgpr {nv}
  .amdhsa_next_free_sgpr {102 if (cfg.prof or cfg.stamps or cfg.padk is not None) else 40}
  .amdhsa_accum_offset {nv}
  .amdhsa_group_segment_fixed_size 0
  .amdhsa_kernarg_size 48
  .amdhsa_user_sgpr_count 2
  .amdhsa_user_sgpr_kernarg_segment_ptr 1
  .amdhsa_system_sgpr_workgroup_id_x 1
.end_amdhsa_kernel
"""
    body="\n".join((x if x.endswith(":") else "    "+x) for x in L)
    return hdr+body+"\n"+ftr
if __name__=="__main__":
    cfg=Cfg()
    out=sys.argv[1]
    for a in sys.argv[2:]:
        k,val=a.split("=",1)
        assert hasattr(cfg,k),k
        setattr(cfg,k,eval(val))
    open(out,"w").write(gen(cfg))
```

```python
import sys, math, struct
NAME="standalone__fused_io_aware_attn__prompt"
def f32bits(x): return struct.unpack("<I",struct.pack("<f",x))[0]
def v(b,n=1): return f"v[{b}:{b+n-1}]" if n>1 else f"v{b}"
def s(b,n=1): return f"s[{b}:{b+n-1}]" if n>1 else f"s{b}"

class Cfg:
    e0=0
    n1=64
    abar0=4; bbar0=1
    abar=10; bbar=3
    prio={26:2,30:1,31:0}
    prio0=3
    stamps=False
    prof=False
    G=3
    padk=None
    store_mod="sc1"
    pat=[3,9,8,3,3,3,3]
    lds={(1,3):['W','K','V']}
    bdelay=0
    earlybar=True
    force_fb=False
    cbias="4.0"
    xtail=True
    pnop=(9,10)
    preadd=False
    lprio=None
    dnop=9
    blate=False
    kd=""
    lones=True
    mfzero=True
    bpos0=(6,0)
    bpos1=(1,4)
    apos0=None
    apos1=None
    align=None
    wpad=False
    xbarpos=4
    qprio=False
    k8oob=True
    chklate=True
    barpos=None
    obias=None
    obias_all=False

def gen(cfg):
    L=[]
    A=L.append
    HEADB=81920
    VBASE=4096; VHALF=40960; KBASE=VBASE+2*VHALF; KHALF=38912
    QST=VBASE+VHALF+28*1024
    G=cfg.G
    NAV=(32+G-1)//G
    idx=1; ak=2; t0=3; t1=4; t2=5; vlane16=6; vq=7
    Qa16=8; Qb16=12; Q8=16; t3=18; t4=19
    K16=[20,28]; K8=[24,32]
    ak8=26 if cfg.k8oob else ak
    akx=27; ako=34; akxo=35; avo=18
    V=[36,44]
    Oa=52; Ob=68
    S=[84,116]
    av=148
    NV=av+NAV
    sQ=8; sK=12; sV=16; sO=20; sD=28
    sw=24; sj=25; skh=26; sqb=27; sflag=34
    sT=40
    def stamp(k):
        if cfg.stamps or cfg.padk is not None:
            A(f"s_memrealtime {s(sT+2*k,2)}")
    def prof(r):
        if cfg.prof: A(f"s_memtime s[{r}:{r+1}]")
    def smf(O,Aa,B): A(f"v_smfmac_f32_32x32x32_bf16 {v(O,16)}, {v(Aa,4)}, {v(B,8)}, v{idx}")
    def mf16(D,Aa,B): A(f"v_mfma_f32_32x32x16_bf16 {v(D,16)}, {v(Aa,4)}, {v(B,4)}, {v(D,16)}")
    def mf2b(D,Aa,B): A(f"v_mfma_f32_32x32x4_2b_bf16 {v(D,32)}, {v(Aa,2)}, {v(B,2)}, {cfg.cbias} cbsz:1 abid:1")
    def mf2x(D,Aa,B): A(f"v_mfma_f32_32x32x4_2b_bf16 {v(D,32)}, {v(Aa,2)}, {v(B,2)}, {cfg.cbias} blgp:2")
    def rdV(t,dst,rng=(0,4),areg=None):
        for j,o in list(enumerate([0,160,640,800]))[rng[0]:rng[1]]:
            A(f"ds_read_b64_tr_b16 {v(dst+2*j,2)}, v{areg or av+t//G} offset:{(t%G)*1280+o}")
    def rdK16(t,p,areg):
        A(f"ds_read_b64 {v(K16[p],2)}, v{areg} offset:{1280*t}")
        A(f"ds_read_b64 {v(K16[p]+2,2)}, v{areg} offset:{1280*t+8}")
    def rdK(t,p):
        A(f"ds_read_b64 {v(K16[p],2)}, v{ak} offset:{1280*t}")
        A(f"ds_read_b64 {v(K16[p]+2,2)}, v{ak} offset:{1280*t+8}")
        A(f"ds_read_b64 {v(K8[p],2)}, v{ak8} offset:{1280*t+16}")
    assert (cfg.abar0+2)*1280 <= 8*1024 and (cfg.bbar0+2)*1280 <= 4*1024
    assert (cfg.abar+2)*1280 <= 16*1024 and (cfg.bbar+2)*1280 <= 8*1024
    ad=cfg.abar-(1 if cfg.apos1 is not None else 0)
    assert (ad+2)*1280-2048 >= 12288 and (ad+1)*1280 >= 12288
    assert cfg.abar0<cfg.abar and cfg.bbar0<cfg.bbar
    cs=math.log2(math.e)/math.sqrt(20.0)

    stamp(0)
    A("s_load_dwordx2 s[8:9], s[0:1], 0       ; q")
    A("s_load_dwordx2 s[12:13], s[0:1], 8     ; k")
    A("s_load_dwordx2 s[16:17], s[0:1], 16    ; v")
    A("s_load_dwordx2 s[20:21], s[0:1], 24    ; out")
    if cfg.stamps: A("s_load_dwordx2 s[36:37], s[0:1], 40    ; ws")
    A("s_cmp_ge_u32 s2, 256")
    A("s_cbranch_scc1 L_end")
    A("s_getpc_b64 s[6:7]")
    A(f"v_mul_u32_u24 v{t1}, 20, v0")
    A(f"global_load_dword v{S[1]+8}, v{t1}, s[6:7]")
    A(f"v_lshrrev_b32 v{t0}, 6, v0")
    A("v_and_b32 v0, 63, v0                   ; lane")
    A(f"v_readfirstlane_b32 s{sw}, v{t0}")
    A(f"v_lshlrev_b32 v{vlane16}, 4, v0")
    A(f"v_lshlrev_b32 v{t2}, 2, v0")
    A("s_and_b32 s3, s2, 7")
    A("s_lshr_b32 s4, s2, 6")
    A("s_lshl_b32 s4, s4, 3")
    A("s_add_u32 s3, s3, s4                   ; head")
    A(f"s_mul_i32 s3, s3, {HEADB}")
    A("s_bfe_u32 s4, s2, 0x30003")
    A("s_mul_i32 s4, s4, 10240")
    A("s_add_u32 s4, s4, s3")
    A(f"s_mul_i32 s33, s{sw}, 1280")
    A("s_add_u32 s35, s4, s33")
    A(f"s_and_b32 s32, s{sw}, 1")
    A(f"s_cselect_b32 s5, 0, {KBASE-2048-VBASE}")
    A(f"s_cselect_b32 s7, 2048, 0")
    A(f"s_addk_i32 s5, {VBASE}")
    A(f"s_lshr_b32 s6, s{sw}, 1")
    A("s_lshl_b32 s38, s6, 11")
    A("s_add_u32 m0, s5, s38")
    A("s_lshl_b32 s39, s6, 10")
    A("s_add_u32 s5, s5, s7")
    A("s_add_u32 s5, s5, s39")
    A(f"s_add_u32 s5, s5, {KHALF}")
    A(f"s_add_u32 s39, s39, {VHALF}")
    A("s_add_u32 s38, s38, s3")
    A("s_add_u32 s39, s39, s3")
    A(f"s_mov_b32 s14, {32*HEADB}")
    A("s_mov_b32 s15, 0x20000")
    A("s_mov_b64 s[30:31], s[14:15]")
    A("s_mov_b64 s[10:11], s[14:15]")
    A("s_mov_b64 s[18:19], s[14:15]")
    A(f"s_cmp_eq_u32 s{sw}, 8")
    A("s_cbranch_scc1 L_loader")
    A("s_cmp_eq_u32 s32, 1")
    if cfg.qprio: A("s_setprio 1")
    A("s_waitcnt lgkmcnt(0)")
    stamp(1)
    QR=S[0]+8
    A(f"buffer_load_dwordx4 {v(QR,4)}, v{vlane16}, {s(sQ,4)}, s35 offen")
    A(f"buffer_load_dword v{QR+4}, v{t2}, {s(sQ,4)}, s35 offen offset:1024")
    if cfg.qprio: A("s_setprio 0")
    A("s_cselect_b32 s28, s16, s12")
    A("s_cselect_b32 s29, s17, s13")
    A(f"buffer_load_dwordx4 v{vlane16}, {s(sD,4)}, s38 offen lds")
    A(f"buffer_load_dwordx4 v{vlane16}, {s(sD,4)}, s38 offen offset:1024 lds")
    A("s_mov_b32 m0, s5")
    A(f"s_lshr_b32 s{skh}, s{sw}, 2")
    A(f"buffer_load_dwordx4 v{vlane16}, {s(sD,4)}, s39 offen lds")
    stamp(2)
    qa=V[1]; qb=V[1]+1; q8=V[1]+2; qw=V[1]+3; qw2=V[1]+4
    A(f"s_add_u32 s33, s33, {QST}")
    A(f"v_add_u32 v{qw}, s33, v{vlane16}")
    A(f"v_add_u32 v{qw2}, s33, v{t2}")
    A(f"s_mov_b32 s8, {f32bits(cs):#x}          ; log2(e)/sqrt(20)")
    A("s_mov_b32 s9, s8")
    if not cfg.lones:
        A(f"s_lshl_b32 s5, s{sw}, 9")
        A(f"v_lshl_add_u32 v{S[1]}, v0, 3, s5")
        A(f"v_mov_b32 v{S[1]+2}, 0x3f80")
        A(f"v_mov_b32 v{S[1]+3}, 0")
        A(f"ds_write_b64 v{S[1]}, {v(S[1]+2,2)}")
    if cfg.blate:
        A(f"s_cmp_eq_u32 s{skh}, 1")
        A("s_cbranch_scc1 L_q")
        A("L_setup:")
    if cfg.mfzero:
        A(f"v_mov_b64 {v(S[1]+2,2)}, 0")
    A("s_mov_b64 s[22:23], s[14:15]")
    A(f"s_and_b32 s{sj}, s{sw}, 3")
    A(f"s_mov_b32 s{sflag}, 0")
    if cfg.mfzero:
        A(f"v_mfma_f32_32x32x4_2b_bf16 {v(Oa,32)}, {v(S[1]+2,2)}, {v(S[1]+2,2)}, 0   ; O = 0")
    A(f"v_and_b32 v{t0}, 31, v0")
    A(f"v_lshrrev_b32 v{t1}, 5, v0            ; h")
    A(f"v_mul_u32_u24 v{t2}, 40, v{t0}")
    A(f"v_lshl_add_u32 v{vq}, v{t1}, 4, v{t2}  ; row*40 + 16h")
    A(f"s_mul_i32 s5, s{sj}, 2560")
    A(f"s_mul_i32 s6, s{skh}, 1280")
    A("s_add_u32 s7, s5, s6")
    A(f"s_add_u32 s{sqb}, s4, s7")
    A(f"s_add_u32 s7, s7, {QST}")
    A(f"v_add_u32 v{qb}, s7, v{vq}")
    A("s_sub_u32 s7, s5, s6")
    A(f"s_add_u32 s7, s7, {QST+1280}")
    A(f"v_add_u32 v{qa}, s7, v{vq}")
    A(f"v_xor_b32 v{t3}, s{skh}, v{t1}")
    A(f"v_xor_b32 v{t3}, 1, v{t3}")
    A(f"v_mul_u32_u24 v{t3}, 0x500, v{t3}")
    A(f"s_add_u32 s5, s5, {QST+32}")
    A(f"v_add3_u32 v{q8}, v{t3}, v{t2}, s5")
    A(f"s_mul_i32 s5, s{skh}, {KHALF}")
    A(f"s_add_u32 s5, s5, {KBASE-2048}")
    A(f"v_add_u32 v{ak}, s5, v{vq}")
    if cfg.k8oob:
        A(f"v_mov_b32 v{ak8}, v{ak}")
        A("s_mov_b32 exec_hi, 0")
        A(f"v_mov_b32 v{ak8}, 0x40000")
        A("s_mov_b64 exec, -1")
    A(f"v_bfe_u32 v{t0}, v0, 2, 2             ; r")
    A(f"v_lshl_add_u32 v{t0}, v{t1}, 3, v{t0}")
    A(f"v_mul_u32_u24 v{t0}, 40, v{t0}")
    A(f"v_and_b32 v{t2}, 1, v0")
    A(f"v_lshl_add_u32 v{t0}, v{t2}, 4, v{t0}  ; + 16*(c&1)")
    A(f"v_bfe_u32 v{t2}, v0, 1, 1")
    A(f"v_lshl_add_u32 v{t0}, v{t2}, 3, v{t0}  ; + 8*(c>>1)")
    A(f"v_bfe_u32 v{t2}, v0, 4, 1")
    A(f"v_lshl_add_u32 v{t0}, v{t2}, 5, v{t0}  ; + 32*g")
    A(f"s_mul_i32 s5, s{skh}, {VHALF}")
    A(f"s_addk_i32 s5, {VBASE}")
    A(f"v_add_u32 v{t0}, s5, v{t0}")
    A(f"v_and_b32 v{t2}, 19, v0               ; g*16 + c")
    A(f"v_cmp_lt_u32 vcc, 16, v{t2}")
    A(f"v_cmp_eq_u32 s[6:7], 17, v{t2}")
    A(f"v_mov_b32 v{S[1]+4}, 0x40000")
    A(f"v_mov_b32 v{S[1]+5}, 224")
    A(f"v_cndmask_b32 v{S[1]+4}, v{S[1]+4}, v{S[1]+5}, s[6:7]")
    A(f"v_mov_b32 v{S[1]+5}, {G*1280}")
    A(f"v_cndmask_b32 v{av}, v{t0}, v{S[1]+4}, vcc")
    A(f"v_cndmask_b32 v{S[1]+5}, v{S[1]+5}, 0, vcc")
    A(f"v_mov_b32 v{idx}, 0xdddddddd")
    for i in range(1,NAV): A(f"v_add_u32 v{av+i}, v{av+i-1}, v{S[1]+5}")
    if cfg.xtail:
        assert 30//G==31//G
        A(f"s_lshl_b32 s5, s{skh}, 1")
        A("s_sub_u32 s5, 1, s5")
        A(f"s_mul_i32 s6, s5, {KHALF}")
        A(f"s_mul_i32 s7, s5, {VHALF}")
        A(f"v_add_u32 v{ako}, s6, v{ak}")
        A(f"v_mul_u32_u24 v{akx}, {1280-16}, v{t1}")
        A(f"v_add3_u32 v{akx}, v{akx}, v{ak}, 32    ; lane*40 + 32")
        A(f"v_add_u32 v{akxo}, s6, v{akx}")
        A(f"v_mov_b32 v{avo}, s7")
        A(f"v_cndmask_b32 v{avo}, v{avo}, 0, vcc")
        A(f"v_add_u32 v{avo}, v{avo}, v{av+30//G}")
    if not cfg.mfzero:
        for i in range(0,32,2): A(f"v_mov_b64 {v(Oa+i,2)}, 0")
    if cfg.obias is not None:
        for o in (Oa,Ob):
            for i in range(8): A(f"v_mov_b32 v{o+i}, {f32bits(cfg.obias):#x}")
            if cfg.obias_all:
                for i in range(8,16): A(f"v_mov_b32 v{o+i}, {f32bits(cfg.obias):#x}")
            else:
                A("s_mov_b32 exec_hi, 0")
                for i in range(8,12): A(f"v_mov_b32 v{o+i}, {f32bits(cfg.obias):#x}")
                A("s_mov_b64 exec, -1")
    A(f"s_mul_i32 s5, s{sj}, 3072")
    A(f"s_add_u32 s6, s5, {KBASE}")
    A(f"s_add_u32 s7, s5, {VBASE}")
    A(f"s_cmp_eq_u32 s{skh}, 1")
    A("s_cselect_b32 s38, s6, s7")
    A("s_cselect_b32 s39, s7, s6")
    if cfg.blate:
        A("s_cbranch_scc1 L_go")
        A("L_q:")
    T=S[0]+16
    A("s_waitcnt vmcnt(3)")
    for i in range(5):
        A(f"v_lshlrev_b32 v{T+2*i}, 16, v{QR+i}")
        A(f"v_and_b32 v{T+2*i+1}, 0xffff0000, v{QR+i}")
    for i in range(5): A(f"v_pk_mul_f32 {v(T+2*i,2)}, {v(T+2*i,2)}, s[8:9]")
    for i in range(5): A(f"v_cvt_pk_bf16_f32 v{QR+i}, v{T+2*i}, v{T+2*i+1}")
    A(f"ds_write_b128 v{qw}, {v(QR,4)}")
    A(f"ds_write_b32 v{qw2}, v{QR+4} offset:1024")
    A(f"s_setprio {cfg.prio0}")
    A("s_waitcnt vmcnt(0) lgkmcnt(0)")
    A("s_barrier")
    stamp(3); prof(44)
    if cfg.blate:
        A("s_cbranch_scc1 L_setup")
        A("L_go:")
    A(f"ds_read_b64 {v(K8[0],2)}, v{ak8} offset:16")
    A(f"ds_read_b64 {v(Q8,2)}, v{q8}")
    A(f"ds_read_b64 {v(K16[0],2)}, v{ak}")
    A(f"ds_read_b64 {v(K16[0]+2,2)}, v{ak} offset:8")
    A(f"ds_read_b64 {v(Qa16,2)}, v{qa}")
    A(f"ds_read_b64 {v(Qa16+2,2)}, v{qa} offset:8")
    A(f"ds_read_b64 {v(Qb16,2)}, v{qb}")
    A(f"ds_read_b64 {v(Qb16+2,2)}, v{qb} offset:8")
    if cfg.bdelay:
        A("s_cbranch_scc0 L_nd")
        for i in range(cfg.bdelay): A("s_nop 15")
        A("L_nd:")
    A("s_waitcnt lgkmcnt(6)")
    mf2b(S[0],K8[0],Q8)
    rdK(1,1)
    rdV(0,V[0])
    A(f"s_nop {cfg.pnop[0]}")
    A("s_waitcnt lgkmcnt(7)")
    mf16(S[0],K16[0],Qa16)
    stamp(4); prof(46)
    if cfg.stamps: A("s_memtime s[64:65]")
    A(f"s_nop {cfg.pnop[1]}")
    XW=t0; XR=t1
    X=Oa if cfg.xtail else S[0]
    if cfg.align is not None:
        A(".p2align 3, , 4") if False else None
        A(".p2alignl 6, 0xbf800000") if cfg.align>=64 else A(".p2alignl 3, 0xbf800000")
        if cfg.align%8==4: A("s_nop 0")
    A("L_loop:")
    for t in range(32):
        p=t&1;q=p^1
        Sa=S[p];Sb=Sa+16;Na=S[q];Nb=Na+16
        A(f"; ---- step {t}")
        def W():
            A("s_waitcnt lgkmcnt(0)")
            if cfg.prof and t%2==0: A(f"s_memtime s[{68+t}:{69+t}]")
            if t in cfg.prio: A(f"s_setprio {cfg.prio[t]}")
            elif cfg.wpad: A("s_nop 0")
            for (st,cond,nm,k) in ((cfg.abar0,1,"a0",9),(cfg.bbar0,0,"b0",9),(cfg.abar,1,"a1",7),(cfg.bbar,0,"b1",7)):
                if t==st and getattr(cfg,nm[0]+"pos"+nm[1]) is None:
                    A(f"s_cbranch_scc{cond} L_n{nm}")
                    stamp(k)
                    A("s_barrier")
                    stamp(k+1)
                    A(f"L_n{nm}:")
        def grp(g):
            if g=="W": W()
            if g=="K" and cfg.xtail and t>=28:
                rdK16(t+2,p,ak)
                A(f"ds_read_b64 {v(K8[p],2)}, v{akx if t==28 else akxo} offset:{1280*30}")
            elif g=="K" and t+2<32: rdK(t+2,p)
            if g[0]=="V" and t+1<32: rdV(t+1,V[q],{"V":(0,4),"V0":(0,2),"V1":(2,4)}[g])
        def ex(lo,hi):
            for e in range(lo,hi): A(f"v_exp_f32 v{Sa+e}, v{Sa+e}")
        if t<(30 if cfg.xtail else 31):
            xt=cfg.xtail and t==29
            M=[lambda:mf16(Sb,K16[p],Qb16),
               (lambda:smf(Ob,V[q]+4,Nb+8)) if t>0 else None,
               (lambda:mf2x(Na,K8[q],Q8)) if xt else (lambda:mf2b(Na,K8[q],Q8)),
               lambda:smf(Oa,V[p],Sa),
               lambda:smf(Oa,V[p]+4,Sa+8),
               lambda:mf16(Na,K16[q],Qb16 if xt else Qa16),
               lambda:smf(Ob,V[p],Sb)]
            pat=cfg.pat
            cc=[sum(pat[:i]) for i in range(8)]
            assert cc[7]==32 and cc[3]>=10 and cc[4]>=18 and cc[6]>=26 and pat[0]>=1
            e=0
            for i in range(7):
                if M[i]: M[i]()
                for k in range(pat[i]+1):
                    isb=t in (cfg.abar0,cfg.bbar0,cfg.abar,cfg.bbar) and cfg.barpos is not None
                    if isb and (i,k)==cfg.barpos: grp("W")
                    for (st,cond,nm) in ((cfg.abar0,1,"a0"),(cfg.bbar0,0,"b0"),(cfg.abar,1,"a1"),(cfg.bbar,0,"b1")):
                        ps=getattr(cfg,nm[0]+"pos"+nm[1])
                        if ps is not None and t==st-1 and (i,k)==ps:
                            assert (i,k)>(1,3)
                            A(f"s_cbranch_scc{cond} L_n{nm}")
                            A("s_barrier")
                            A(f"L_n{nm}:")
                    for g in cfg.lds.get((i,k),[]):
                        if not (isb and g=="W"): grp(g)
                    if k<pat[i]:
                        ex(e,e+1); e+=1
            if xt:
                assert sum(pat[4:])>=6
                A(f"v_add_u32 v{XW}, s38, v{vlane16}")
                for k in range(3): A(f"ds_write_b128 v{XW}, {v(Oa+4*k,4)} offset:{1024*k}")
        elif cfg.xtail:
            def xch():
                A("s_barrier")
                prof(50)
                for i in (2,0,1): A(f"ds_read_b128 {v(X+4*i,4)}, v{XR} offset:{1024*i}")
            if t==30:
                A("s_waitcnt lgkmcnt(3)")
                if cfg.prof: A(f"s_memtime s[{68+t}:{69+t}]")
                if t in cfg.prio: A(f"s_setprio {cfg.prio[t]}")
                mf16(Sb,K16[1],Qb16); ex(0,3)
                smf(Ob,V[1]+4,Nb+8); ex(3,6)
                rdK16(30,0,ako); rdV(31,V[1]); rdK16(31,1,ako)
                ex(6,12)
                mf2x(Na,K8[1],Q8); ex(12,20)
                smf(Ob,V[0],Sa); ex(20,23)
                smf(Ob,V[0]+4,Sa+8); ex(23,26)
                A("s_waitcnt lgkmcnt(0)")
                rdV(30,V[0],areg=avo)
                mf16(Na,K16[0],Qb16)
                if cfg.xbarpos in (3,4):
                    A("s_cbranch_scc0 L_x1"); A("s_barrier"); A("L_x1:")
                ex(26,29)
                smf(Ob,V[1],Sb); ex(29,32)
                A(f"v_add_u32 v{XR}, s39, v{vlane16}")
            else:
                if t in cfg.prio: A(f"s_setprio {cfg.prio[t]}")
                def xrd():
                    for i in (2,0,1): A(f"ds_read_b128 {v(X+4*i,4)}, v{XR} offset:{1024*i}")
                if cfg.xbarpos==0: xch()
                mf16(Sb,K16[1],Qb16)
                if cfg.xbarpos==2:
                    A("s_cbranch_scc0 L_x1"); A("s_barrier"); A("L_x1:")
                ex(0,3)
                smf(Ob,V[1]+4,Nb+8); ex(3,6)
                if cfg.xbarpos==3:
                    A("s_cbranch_scc1 L_x2"); A("s_barrier"); A("L_x2:")
                rdV(31,V[1],areg=avo)
                ex(6,10)
                A(f"s_waitcnt lgkmcnt({7 if cfg.xbarpos==0 else 4})")
                smf(Ob,V[0],Sa); ex(10,18)
                if cfg.xbarpos==1: xch()
                if cfg.xbarpos in (2,4):
                    A("s_cbranch_scc1 L_x2"); A("s_barrier"); A("L_x2:")
                if cfg.xbarpos>=2: xrd()
                smf(Ob,V[0]+4,Sa+8); ex(18,26)
                if not cfg.preadd:
                    A(f"s_waitcnt lgkmcnt({0 if cfg.xbarpos==0 else 3})")
                    smf(Ob,V[1],Sb); ex(26,32)
                    A("s_nop 1")
                    smf(Ob,V[1]+4,Sb+8)
                else:
                    A(f"s_waitcnt lgkmcnt({0 if cfg.xbarpos==0 else 3})")
                    smf(Ob,V[1],Sb); ex(26,32)
                    A("s_waitcnt lgkmcnt(0)")
                    for i in range(0,12,2): A(f"v_pk_add_f32 {v(X+i,2)}, {v(Ob+i,2)}, {v(X+i,2)}")
                    A(f"v_add_u32 v{XW}, s39, v{vq}")
                    A("s_nop 0")
                    smf(X,V[1]+4,Sb+8)
        else:
            mf16(Sb,K16[p],Qb16); ex(0,3)
            smf(Ob,V[q]+4,Nb+8); ex(3,6)
            W()
            ex(6,10)
            smf(Oa,V[p],Sa); ex(10,18)
            smf(Oa,V[p]+4,Sa+8); ex(18,23)
            A(f"v_add_u32 v{XW}, s38, v{vlane16}")
            A(f"v_add_u32 v{XR}, s39, v{vlane16}")
            ex(23,24)
            for k in range(3): A(f"ds_write_b128 v{XW}, {v(Oa+4*k,4)} offset:{1024*k}")
            ex(24,26)
            smf(Ob,V[p],Sb)
            if cfg.earlybar:
                ex(26,28)
                A("s_waitcnt lgkmcnt(0)")
                A("s_barrier")
                prof(50)
                for i in (2,0,1): A(f"ds_read_b128 {v(X+4*i,4)}, v{XR} offset:{1024*i}")
                ex(28,32)
            else: ex(26,32)
            A("s_nop 1")
            smf(Ob,V[p]+4,Sb+8)
    stamp(5); prof(48)
    if cfg.stamps: A("s_memtime s[66:67]")
    if not cfg.earlybar:
        A("s_waitcnt lgkmcnt(0)")
        A("s_barrier")
        prof(50)
        for i in (2,0,1): A(f"ds_read_b128 {v(X+4*i,4)}, v{XR} offset:{1024*i}")
        A(f"v_add_u32 v{XW}, s39, v{vq}")
        A("s_nop 5")
    elif not cfg.preadd:
        A(f"v_add_u32 v{XW}, s39, v{vq}")
        A(f"s_nop {cfg.dnop}")
    lsum=(S[0] if cfg.preadd else X+12); l2=lsum+1; rc=lsum+2
    if not cfg.preadd:
        A("s_waitcnt lgkmcnt(0)")
        A(f"v_add_f32 v{l2}, v{Ob+8}, v{X+8}")
        A(f"v_add_f32 v{lsum}, v{Ob+8}, v{X+8}")
        for i in (0,2): A(f"v_pk_add_f32 {v(X+i,2)}, {v(Ob+i,2)}, {v(X+i,2)}")
        A("L_norm:")
        A(f"v_permlane32_swap_b32 v{l2}, v{lsum}")
        for i in (4,6): A(f"v_pk_add_f32 {v(X+i,2)}, {v(Ob+i,2)}, {v(X+i,2)}")
        A(f"v_rcp_f32 v{rc}, v{lsum}")
        for i in (8,10): A(f"v_pk_add_f32 {v(X+i,2)}, {v(Ob+i,2)}, {v(X+i,2)}")
    else:
        A(f"s_nop {cfg.dnop+2}")
        A("L_norm:")
        A(f"v_mov_b32 v{l2}, v{X+8}")
        A(f"v_mov_b32 v{lsum}, v{X+8}")
        A("s_nop 1")
        A(f"v_permlane32_swap_b32 v{l2}, v{lsum}")
        A("s_nop 0")
        A(f"v_rcp_f32 v{rc}, v{lsum}")
        A("s_nop 0")
    P=S[0]+16; R=S[0]+24
    for i in range(0,8,2):
        A(f"v_pk_mul_f32 {v(X+i,2)}, {v(X+i,2)}, {v(rc,2)} op_sel_hi:[1,0]")
    for i in range(4): A(f"v_cvt_pk_bf16_f32 v{P+i}, v{X+2*i}, v{X+2*i+1}")
    A(f"ds_write2_b64 v{XW}, {v(P,2)}, {v(P+2,2)} offset0:0 offset1:1")
    for i in range(8,12,2):
        A(f"v_pk_mul_f32 {v(X+i,2)}, {v(X+i,2)}, {v(rc,2)} op_sel_hi:[1,0]")
    for i in range(4,6): A(f"v_cvt_pk_bf16_f32 v{P+i}, v{X+2*i}, v{X+2*i+1}")
    A("s_mov_b32 exec_hi, 0")
    A(f"ds_write_b64 v{XW}, {v(P+4,2)} offset:32")
    A("s_mov_b64 exec, -1")
    A(f"ds_read_b128 {v(R,4)}, v{XR}")
    A(f"ds_read_b128 {v(R+4,4)}, v{XR} offset:1024")
    def chk():
        A("; guard of the constant shift: redo with the true max unless 1 <= l < 2^100 and all outputs are finite")
        for i in (0,4,8): A(f"v_pk_add_f32 {v(X+i,2)}, {v(X+i,2)}, {v(X+i+2,2)}")
        A(f"v_cmp_nle_f32 vcc, 1.0, v{lsum}")
        A(f"v_pk_add_f32 {v(X,2)}, {v(X,2)}, {v(X+4,2)}")
        A(f"s_mov_b32 s5, {f32bits(2.0**100):#x}")
        A(f"v_pk_add_f32 {v(X,2)}, {v(X,2)}, {v(X+8,2)}")
        A(f"v_cmp_ngt_f32 s[6:7], s5, v{lsum}")
        A(f"v_add_f32 v{X}, v{X}, v{X+1}")
        A("s_or_b64 s[6:7], s[6:7], vcc")
        A("s_movk_i32 s5, 0x207")
        A(f"v_cmp_class_f32 vcc, v{X}, s5")
    if not cfg.chklate: chk()
    A("s_waitcnt lgkmcnt(1)")
    A(f"buffer_store_dwordx4 {v(R,4)}, v{vlane16}, {s(sO,4)}, s{sqb} offen {cfg.store_mod}")
    A("s_mov_b64 exec, 0xffff")
    A("s_waitcnt lgkmcnt(0)")
    A(f"buffer_store_dwordx4 {v(R+4,4)}, v{vlane16}, {s(sO,4)}, s{sqb} offen offset:1024 {cfg.store_mod}")
    A("s_mov_b64 exec, -1")
    if cfg.chklate: chk()
    A("s_or_b64 s[6:7], s[6:7], vcc")
    if cfg.force_fb: A("s_cmp_eq_u32 s2, s2")
    A("s_cbranch_scc1 L_fallback")
    A("L_done:")
    if cfg.stamps:
        A("s_waitcnt vmcnt(0)")
        stamp(6)
        A("s_waitcnt lgkmcnt(0)")
        A(f"s_lshl_b32 s5, s2, 3")
        A(f"s_add_u32 s5, s5, s{sw}")
        A(f"s_lshl_b32 s5, s5, 6")
        A(f"v_mov_b32 v{t0}, s5")
        A("s_mov_b64 exec, 1")
        A("s_sub_u32 s66, s66, s64")
        A(f"v_mov_b32 v{t1}, s66")
        A(f"global_store_dword v{t0}, v{t1}, s[36:37] offset:60")
        for i in range(11):
            A(f"v_mov_b32 v{t1}, s{sT+2*i}")
            A(f"global_store_dword v{t0}, v{t1}, s[36:37] offset:{4*i}")
    if cfg.prof:
        A("s_load_dwordx2 s[36:37], s[0:1], 40")
        A("s_memtime s[40:41]")
        A("s_waitcnt vmcnt(0)")
        A("s_memtime s[42:43]")
        A("s_waitcnt lgkmcnt(0)")
        A(f"s_lshl_b32 s5, s2, 3")
        A(f"s_add_u32 s5, s5, s{sw}")
        A(f"s_lshl_b32 s5, s5, 7")
        A(f"v_mov_b32 v{t0}, s5")
        A("s_mov_b64 exec, 1")
        for i,r in enumerate([44,46]+[68+2*k for k in range(16)]+[48,50,40,42]):
            A(f"v_mov_b32 v{t1}, s{r}")
            A(f"global_store_dword v{t0}, v{t1}, s[36:37] offset:{4*i}")
    if cfg.padk is not None:
        A("s_waitcnt vmcnt(0)")
        stamp(6)
        A("s_waitcnt lgkmcnt(0)")
        A(f"s_add_u32 s5, s{sT+2*cfg.padk}, 4000")
        A("L_spin:")
        A("s_memrealtime s[6:7]")
        A("s_waitcnt lgkmcnt(0)")
        A("s_sub_u32 s6, s6, s5")
        A("s_cmp_lt_i32 s6, 0")
        A("s_cbranch_scc1 L_spin")
    A("L_end:")
    A("s_endpgm")

    A("L_loader:")
    if cfg.lprio is not None: A(f"s_setprio {cfg.lprio}")
    if cfg.lones:
        A(f"v_mov_b32 v{S[0]}, 0x3f80")
        A(f"v_mov_b32 v{S[0]+1}, 0")
        A(f"v_mov_b32 v{S[0]+2}, 0x3f80")
        A(f"v_mov_b32 v{S[0]+3}, 0")
        for i in range(4): A(f"ds_write_b128 v{vlane16}, {v(S[0],4)} offset:{1024*i}")
    A("s_waitcnt lgkmcnt(0)")
    def ldsaddr(kind,h,c): return (KBASE+h*KHALF+1024*c-2048) if kind=="K" else (VBASE+h*VHALF+1024*c)
    def runs(kind,h,c0,c1): return [(kind,h,c,min(4,c1-c)) for c in range(c0,c1,4)]
    first=[("K",0,8,4),("V",0,8,4),("K",1,4,4),("V",1,4,4),("K",0,12,4),("V",0,12,4)]
    import itertools
    def interleave(*ls): return [x for tup in itertools.zip_longest(*ls) for x in tup if x]
    free=interleave(runs("K",0,16,38),runs("V",0,16,40),runs("K",1,8,40),runs("V",1,8,28))
    late=runs("K",0,38,40)+runs("V",1,28,40)
    n=0; done0=False; done1=False
    for (kind,h,c,cnt) in first+free+[None]+late if False else first+free:
        pass
    seq=first+free
    def emit(kind,h,c,cnt):
        A(f"s_mov_b32 m0, {ldsaddr(kind,h,c)}")
        A(f"s_add_u32 s5, s3, {h*VHALF+1024*c}")
        for i in range(cnt):
            A(f"buffer_load_dwordx4 v{vlane16}, {s(sK if kind=='K' else sV,4)}, s5 offen offset:{1024*i} lds")
    for r in seq:
        if not done0 and n>=cfg.e0:
            A("s_barrier                              ; b0"); done0=True
        if not done1 and n>=cfg.n1:
            A(f"s_waitcnt vmcnt({min(63,n-24)})")
            A("s_barrier                              ; b0'"); done1=True
        emit(*r); n+=r[3]
    assert done0
    if not done1:
        A(f"s_waitcnt vmcnt({min(63,n-24)})")
        A("s_barrier                              ; b0'")
    for r in late: emit(*r); n+=r[3]
    assert n==160-24
    A("s_waitcnt vmcnt(0)")
    A("s_barrier                              ; b1")
    A("s_endpgm")

    A("L_fallback:")
    A(f"s_cmp_lg_u32 s{sflag}, 0")
    A("s_cbranch_scc1 L_done")
    A(f"s_mov_b32 s{sflag}, 1")
    FS=S[1]; m=Oa; mn=Oa+1; al=Oa+2; fa=Oa+3; q8z=Oa+4; tm=Oa+6
    STG=KBASE+KHALF
    A(f"s_lshl_b32 s5, s{sw}, 11")
    A(f"s_add_u32 s5, s5, {STG}")
    A("s_mov_b32 m0, s5")
    A(f"s_mul_i32 s6, s{skh}, {VHALF}")
    A("s_sub_u32 s5, s5, s6")
    A(f"s_sub_u32 s5, s5, {VBASE}")
    A(f"v_and_b32 v{tm}, 19, v0")
    A(f"v_cmp_lt_u32 vcc, 16, v{tm}")
    A(f"v_add_u32 v{fa}, s5, v{av}")
    A("s_nop 0")
    A(f"v_cndmask_b32 v{fa}, v{fa}, v{av}, vcc")
    A("v_cmp_lt_u32 vcc, 31, v0")
    A("s_nop 1")
    A(f"v_cndmask_b32 v{q8z}, 0, v{Q8}, vcc")
    A(f"v_cndmask_b32 v{q8z+1}, 0, v{Q8+1}, vcc")
    A(f"v_mov_b32 v{m}, 0xff7fffff")
    for i in range(0,16,2): A(f"v_mov_b64 {v(Ob+i,2)}, 0")
    A("s_mov_b32 s5, s3")
    A(f"s_add_u32 s6, s3, {HEADB}")
    A("L_fb:")
    A(f"buffer_load_dwordx4 {v(K16[0],4)}, v{vq}, {s(sK,4)}, s5 offen")
    A(f"buffer_load_dwordx2 {v(K8[0],2)}, v{vq}, {s(sK,4)}, s5 offen offset:16")
    A(f"buffer_load_dwordx4 v{vlane16}, {s(sV,4)}, s5 offen lds")
    A("s_mov_b64 exec, 0xffff")
    A(f"buffer_load_dwordx4 v{vlane16}, {s(sV,4)}, s5 offen offset:1024 lds")
    A("s_mov_b64 exec, -1")
    A("s_waitcnt vmcnt(0)")
    for j,o in enumerate([0,160,640,800]): A(f"ds_read_b64_tr_b16 {v(V[0]+2*j,2)}, v{fa} offset:{o}")
    A(f"v_mfma_f32_32x32x8_bf16 {v(FS,16)}, {v(K8[0],2)}, {v(q8z,2)}, 0")
    A("s_nop 11")
    mf16(FS,K16[0],Qb16)
    A("s_nop 15")
    A(f"v_max3_f32 v{mn}, v{FS}, v{FS+1}, v{m}")
    for i in range(2,16,2): A(f"v_max3_f32 v{mn}, v{FS+i}, v{FS+i+1}, v{mn}")
    A(f"v_mov_b32 v{tm}, v{mn}")
    A("s_nop 1")
    A(f"v_permlane32_swap_b32 v{tm}, v{mn}")
    A("s_nop 1")
    A(f"v_max_f32 v{mn}, v{mn}, v{tm}")
    A(f"v_sub_f32 v{al}, v{m}, v{mn}")
    A(f"v_exp_f32 v{al}, v{al}")
    A(f"v_mov_b32 v{m}, v{mn}")
    for i in range(16): A(f"v_sub_f32 v{FS+i}, v{FS+i}, v{mn}")
    for i in range(16): A(f"v_exp_f32 v{FS+i}, v{FS+i}")
    for i in range(12): A(f"v_mul_f32 v{Ob+i}, v{Ob+i}, v{al}")
    A("s_waitcnt lgkmcnt(0)")
    A("s_nop 1")
    smf(Ob,V[0],FS)
    smf(Ob,V[0]+4,FS+8)
    A("s_addk_i32 s5, 1280")
    A("s_cmp_lt_u32 s5, s6")
    A("s_cbranch_scc1 L_fb")
    A("s_nop 15")
    if cfg.preadd:
        for i in range(12): A(f"v_mov_b32 v{X+i}, v{Ob+i}")
    else:
        for i in range(4): A(f"v_mov_b32 v{X+i}, v{Ob+i}")
        for i in range(4,12): A(f"v_mov_b32 v{X+i}, 0")
        A(f"v_mov_b32 v{l2}, v{Ob+8}")
        A(f"v_mov_b32 v{lsum}, v{Ob+8}")
    A("s_nop 1")
    A("s_branch L_norm")
    A("L_codeend:")
    A(f".if (L_codeend - {NAME}_kernel) < {576*20+64}")
    A('.error "code prefetch would read past the kernel"')
    A(".endif")
    hdr=f"""; Fused attention forward, B=1 H=32 S=2048 Dh=20, bf16 in / bf16 out  (emitted by my generator gen/genY13.py)
; @launch grid=(256,1,1) block=(576,1,1) lds=163840
;
; One workgroup = one head x 256 query rows (the 8 workgroups of a head share wg%8, for L2 locality only).
.amdgcn_target "amdgcn-amd-amdhsa--gfx950"
.text
.globl {NAME}_kernel
.p2align 8
.type {NAME}_kernel,@function
{NAME}_kernel:
"""
    nv=(NV+7)//8*8
    ftr=f""".section .rodata,"a"
.p2align 6
.amdhsa_kernel {NAME}_kernel
  .amdhsa_next_free_vgpr {nv}
  .amdhsa_next_free_sgpr {102 if (cfg.prof or cfg.stamps or cfg.padk is not None) else 40}
  .amdhsa_accum_offset {nv}
  .amdhsa_group_segment_fixed_size 0
  .amdhsa_kernarg_size 48
  .amdhsa_user_sgpr_count 2
  .amdhsa_user_sgpr_kernarg_segment_ptr 1
  .amdhsa_system_sgpr_workgroup_id_x 1
{cfg.kd.replace('+',' ').replace(';',chr(10))}.end_amdhsa_kernel
"""
    body="\n".join((x if x.endswith(":") else "    "+x) for x in L)
    return hdr+body+"\n"+ftr
if __name__=="__main__":
    cfg=Cfg()
    out=sys.argv[1]
    for a in sys.argv[2:]:
        k,val=a.split("=",1)
        assert hasattr(cfg,k),k
        setattr(cfg,k,eval(val))
    open(out,"w").write(gen(cfg))
```

```python
import sys, math, struct
NAME="standalone__fused_io_aware_attn__prompt"
def f32bits(x): return struct.unpack("<I",struct.pack("<f",x))[0]
def v(b,n=1): return f"v[{b}:{b+n-1}]" if n>1 else f"v{b}"
def s(b,n=1): return f"s[{b}:{b+n-1}]" if n>1 else f"s{b}"

class Cfg:
    e0=0
    n1=48
    abar0=4; bbar0=1
    abar=14; bbar=3
    prio={26:2,30:1,31:0}
    prio0=3
    stamps=False
    prof=False
    G=3
    padk=None
    store_mod="sc1"
    pat=[3,9,8,3,3,3,3]
    lds={(1,3):['W','K','V']}
    bdelay=0
    earlybar=True
    force_fb=False
    cbias="4.0"
    xtail=True
    ntq=''
    ntc=''
    ntl=''
    split0=False
    d23pos=1
    eb=0
    b0bstep=0
    cA=20
    cB=8
    kvpf=None
    pfpos=0
    pnop=(9,10)
    preadd=False
    lprio=None
    dnop=9
    blate=False
    kd=""
    lones=True
    mfzero=True
    bpos0=(6,0)
    bpos1=(6,0)
    apos0=None
    apos1=None
    align=None
    wpad=False
    xbarpos=4
    qprio=False
    k8oob=True
    chklate=True
    barpos=None
    obias=None
    obias_all=False

def gen(cfg):
    L=[]
    A=L.append
    HEADB=81920
    VBASE=4096; VHALF=40960; KBASE=VBASE+2*VHALF; KHALF=38912
    QST=VBASE+VHALF+28*1024
    G=cfg.G
    NAV=(32+G-1)//G
    idx=1; ak=2; t0=3; t1=4; t2=5; vlane16=6; vq=7
    Qa16=8; Qb16=12; Q8=16; t3=18; t4=19
    K16=[20,28]; K8=[24,32]
    ak8=26 if cfg.k8oob else ak
    akx=27; ako=34; akxo=35; avo=18
    V=[36,44]
    Oa=52; Ob=68
    S=[84,116]
    av=148
    NV=av+NAV
    sQ=8; sK=12; sV=16; sO=20; sD=28
    sw=24; sj=25; skh=26; sqb=27; sflag=34
    sT=40
    def stamp(k):
        if cfg.stamps or cfg.padk is not None:
            A(f"s_memrealtime {s(sT+2*k,2)}")
    def prof(r):
        if cfg.prof: A(f"s_memtime s[{r}:{r+1}]")
    def smf(O,Aa,B): A(f"v_smfmac_f32_32x32x32_bf16 {v(O,16)}, {v(Aa,4)}, {v(B,8)}, v{idx}")
    def mf16(D,Aa,B): A(f"v_mfma_f32_32x32x16_bf16 {v(D,16)}, {v(Aa,4)}, {v(B,4)}, {v(D,16)}")
    def mf2b(D,Aa,B): A(f"v_mfma_f32_32x32x4_2b_bf16 {v(D,32)}, {v(Aa,2)}, {v(B,2)}, {cfg.cbias} cbsz:1 abid:1")
    def mf2x(D,Aa,B): A(f"v_mfma_f32_32x32x4_2b_bf16 {v(D,32)}, {v(Aa,2)}, {v(B,2)}, {cfg.cbias} blgp:2")
    def rdV(t,dst,rng=(0,4),areg=None):
        for j,o in list(enumerate([0,160,640,800]))[rng[0]:rng[1]]:
            A(f"ds_read_b64_tr_b16 {v(dst+2*j,2)}, v{areg or av+t//G} offset:{(t%G)*1280+o}")
    def rdK16(t,p,areg):
        A(f"ds_read_b64 {v(K16[p],2)}, v{areg} offset:{1280*t}")
        A(f"ds_read_b64 {v(K16[p]+2,2)}, v{areg} offset:{1280*t+8}")
    def rdK(t,p):
        A(f"ds_read_b64 {v(K16[p],2)}, v{ak} offset:{1280*t}")
        A(f"ds_read_b64 {v(K16[p]+2,2)}, v{ak} offset:{1280*t+8}")
        A(f"ds_read_b64 {v(K8[p],2)}, v{ak8} offset:{1280*t+16}")
    assert (cfg.abar0+2)*1280 <= 8*1024 and (cfg.bbar0+2)*1280 <= 4*1024
    assert (cfg.abar+2)*1280 <= cfg.cA*1024 and (cfg.bbar+2)*1280 <= cfg.cB*1024
    ad=cfg.abar-(1 if cfg.apos1 is not None else 0)
    assert (ad+2)*1280-2048 >= 12288 and (ad+1)*1280 >= 12288
    assert cfg.abar0<cfg.abar and cfg.bbar0<cfg.bbar
    cs=math.log2(math.e)/math.sqrt(20.0)

    stamp(0)
    A("s_load_dwordx2 s[8:9], s[0:1], 0       ; q")
    A("s_load_dwordx2 s[12:13], s[0:1], 8     ; k")
    A("s_load_dwordx2 s[16:17], s[0:1], 16    ; v")
    A("s_load_dwordx2 s[20:21], s[0:1], 24    ; out")
    if cfg.stamps: A("s_load_dwordx2 s[36:37], s[0:1], 40    ; ws")
    A("s_cmp_ge_u32 s2, 256")
    A("s_cbranch_scc1 L_end")
    A("s_getpc_b64 s[6:7]")
    A(f"v_mul_u32_u24 v{t1}, 20, v0")
    A(f"global_load_dword v{S[1]+8}, v{t1}, s[6:7]")
    A(f"v_lshrrev_b32 v{t0}, 6, v0")
    A("v_and_b32 v0, 63, v0                   ; lane")
    A(f"v_readfirstlane_b32 s{sw}, v{t0}")
    A(f"v_lshlrev_b32 v{vlane16}, 4, v0")
    A(f"v_lshlrev_b32 v{t2}, 2, v0")
    A("s_and_b32 s3, s2, 7")
    A("s_lshr_b32 s4, s2, 6")
    A("s_lshl_b32 s4, s4, 3")
    A("s_add_u32 s3, s3, s4                   ; head")
    A(f"s_mul_i32 s3, s3, {HEADB}")
    A("s_bfe_u32 s4, s2, 0x30003")
    A("s_mul_i32 s4, s4, 10240")
    A("s_add_u32 s4, s4, s3")
    A(f"s_mul_i32 s33, s{sw}, 1280")
    A("s_add_u32 s35, s4, s33")
    A(f"s_and_b32 s32, s{sw}, 1")
    A(f"s_cselect_b32 s5, 0, {KBASE-2048-VBASE}")
    A(f"s_cselect_b32 s7, 2048, 0")
    A(f"s_addk_i32 s5, {VBASE}")
    A(f"s_lshr_b32 s6, s{sw}, 1")
    A(f"s_lshl_b32 s38, s6, {10 if cfg.split0 else 11}")
    A("s_add_u32 m0, s5, s38")
    A("s_lshl_b32 s39, s6, 10")
    A("s_add_u32 s5, s5, s7")
    A("s_add_u32 s5, s5, s39")
    A(f"s_add_u32 s5, s5, {KHALF}")
    A(f"s_add_u32 s39, s39, {VHALF}")
    A("s_add_u32 s38, s38, s3")
    A("s_add_u32 s39, s39, s3")
    A(f"s_mov_b32 s14, {32*HEADB}")
    A("s_mov_b32 s15, 0x20000")
    A("s_mov_b64 s[30:31], s[14:15]")
    A("s_mov_b64 s[10:11], s[14:15]")
    A("s_mov_b64 s[18:19], s[14:15]")
    A(f"s_cmp_eq_u32 s{sw}, 8")
    A("s_cbranch_scc1 L_loader")
    A("s_cmp_eq_u32 s32, 1")
    if cfg.qprio: A("s_setprio 1")
    A("s_waitcnt lgkmcnt(0)")
    stamp(1)
    QR=S[0]+8
    A(f"buffer_load_dwordx4 {v(QR,4)}, v{vlane16}, {s(sQ,4)}, s35 offen{cfg.ntq}")
    A(f"buffer_load_dword v{QR+4}, v{t2}, {s(sQ,4)}, s35 offen offset:1024{cfg.ntq}")
    if cfg.qprio: A("s_setprio 0")
    A("s_cselect_b32 s28, s16, s12")
    A("s_cselect_b32 s29, s17, s13")
    A(f"buffer_load_dwordx4 v{vlane16}, {s(sD,4)}, s38 offen{cfg.ntc} lds")
    def d23():
        A("s_add_u32 m0, m0, 4096")
        A("s_addk_i32 s38, 4096")
        A(f"buffer_load_dwordx4 v{vlane16}, {s(sD,4)}, s38 offen{cfg.ntc} lds")
        A("s_mov_b32 m0, s32")
        A("s_nop 0")
        A(f"buffer_load_dwordx4 v{vlane16}, {s(sD,4)}, s39 offen{cfg.ntc} lds")
    if cfg.split0:
        A(f"s_lshr_b32 s{skh}, s{sw}, 2")
        A("s_mov_b32 s32, s5")
        if cfg.d23pos==0: d23()
    else:
        A(f"buffer_load_dwordx4 v{vlane16}, {s(sD,4)}, s38 offen offset:1024{cfg.ntc} lds")
        A("s_mov_b32 m0, s5")
        A(f"s_lshr_b32 s{skh}, s{sw}, 2")
        A(f"buffer_load_dwordx4 v{vlane16}, {s(sD,4)}, s39 offen{cfg.ntc} lds")
    stamp(2)
    qa=V[1]; qb=V[1]+1; q8=V[1]+2; qw=V[1]+3; qw2=V[1]+4
    A(f"s_add_u32 s33, s33, {QST}")
    A(f"v_add_u32 v{qw}, s33, v{vlane16}")
    A(f"v_add_u32 v{qw2}, s33, v{t2}")
    A(f"s_mov_b32 s8, {f32bits(cs):#x}          ; log2(e)/sqrt(20)")
    A("s_mov_b32 s9, s8")
    if not cfg.lones:
        A(f"s_lshl_b32 s5, s{sw}, 9")
        A(f"v_lshl_add_u32 v{S[1]}, v0, 3, s5")
        A(f"v_mov_b32 v{S[1]+2}, 0x3f80")
        A(f"v_mov_b32 v{S[1]+3}, 0")
        A(f"ds_write_b64 v{S[1]}, {v(S[1]+2,2)}")
    if cfg.blate:
        A(f"s_cmp_eq_u32 s{skh}, 1")
        A("s_cbranch_scc1 L_q")
        A("L_setup:")
    if cfg.mfzero:
        A(f"v_mov_b64 {v(S[1]+2,2)}, 0")
    A("s_mov_b64 s[22:23], s[14:15]")
    A(f"s_and_b32 s{sj}, s{sw}, 3")
    A(f"s_mov_b32 s{sflag}, 0")
    if cfg.mfzero:
        A(f"v_mfma_f32_32x32x4_2b_bf16 {v(Oa,32)}, {v(S[1]+2,2)}, {v(S[1]+2,2)}, 0   ; O = 0")
    A(f"v_and_b32 v{t0}, 31, v0")
    A(f"v_lshrrev_b32 v{t1}, 5, v0            ; h")
    A(f"v_mul_u32_u24 v{t2}, 40, v{t0}")
    A(f"v_lshl_add_u32 v{vq}, v{t1}, 4, v{t2}  ; row*40 + 16h")
    A(f"s_mul_i32 s5, s{sj}, 2560")
    A(f"s_mul_i32 s6, s{skh}, 1280")
    A("s_add_u32 s7, s5, s6")
    A(f"s_add_u32 s{sqb}, s4, s7")
    A(f"s_add_u32 s7, s7, {QST}")
    A(f"v_add_u32 v{qb}, s7, v{vq}")
    A("s_sub_u32 s7, s5, s6")
    A(f"s_add_u32 s7, s7, {QST+1280}")
    A(f"v_add_u32 v{qa}, s7, v{vq}")
    A(f"v_xor_b32 v{t3}, s{skh}, v{t1}")
    A(f"v_xor_b32 v{t3}, 1, v{t3}")
    A(f"v_mul_u32_u24 v{t3}, 0x500, v{t3}")
    A(f"s_add_u32 s5, s5, {QST+32}")
    A(f"v_add3_u32 v{q8}, v{t3}, v{t2}, s5")
    if cfg.split0 and cfg.d23pos==1: d23()
    A(f"s_mul_i32 s5, s{skh}, {KHALF}")
    A(f"s_add_u32 s5, s5, {KBASE-2048}")
    A(f"v_add_u32 v{ak}, s5, v{vq}")
    if cfg.k8oob:
        A(f"v_mov_b32 v{ak8}, v{ak}")
        A("s_mov_b32 exec_hi, 0")
        A(f"v_mov_b32 v{ak8}, 0x40000")
        A("s_mov_b64 exec, -1")
    A(f"v_bfe_u32 v{t0}, v0, 2, 2             ; r")
    A(f"v_lshl_add_u32 v{t0}, v{t1}, 3, v{t0}")
    A(f"v_mul_u32_u24 v{t0}, 40, v{t0}")
    A(f"v_and_b32 v{t2}, 1, v0")
    A(f"v_lshl_add_u32 v{t0}, v{t2}, 4, v{t0}  ; + 16*(c&1)")
    A(f"v_bfe_u32 v{t2}, v0, 1, 1")
    A(f"v_lshl_add_u32 v{t0}, v{t2}, 3, v{t0}  ; + 8*(c>>1)")
    A(f"v_bfe_u32 v{t2}, v0, 4, 1")
    A(f"v_lshl_add_u32 v{t0}, v{t2}, 5, v{t0}  ; + 32*g")
    A(f"s_mul_i32 s5, s{skh}, {VHALF}")
    A(f"s_addk_i32 s5, {VBASE}")
    A(f"v_add_u32 v{t0}, s5, v{t0}")
    A(f"v_and_b32 v{t2}, 19, v0               ; g*16 + c")
    A(f"v_cmp_lt_u32 vcc, 16, v{t2}")
    A(f"v_cmp_eq_u32 s[6:7], 17, v{t2}")
    A(f"v_mov_b32 v{S[1]+4}, 0x40000")
    A(f"v_mov_b32 v{S[1]+5}, 224")
    A(f"v_cndmask_b32 v{S[1]+4}, v{S[1]+4}, v{S[1]+5}, s[6:7]")
    A(f"v_mov_b32 v{S[1]+5}, {G*1280}")
    A(f"v_cndmask_b32 v{av}, v{t0}, v{S[1]+4}, vcc")
    A(f"v_cndmask_b32 v{S[1]+5}, v{S[1]+5}, 0, vcc")
    A(f"v_mov_b32 v{idx}, 0xdddddddd")
    for i in range(1,NAV): A(f"v_add_u32 v{av+i}, v{av+i-1}, v{S[1]+5}")
    if cfg.xtail:
        assert 30//G==31//G
        A(f"s_lshl_b32 s5, s{skh}, 1")
        A("s_sub_u32 s5, 1, s5")
        A(f"s_mul_i32 s6, s5, {KHALF}")
        A(f"s_mul_i32 s7, s5, {VHALF}")
        A(f"v_add_u32 v{ako}, s6, v{ak}")
        A(f"v_mul_u32_u24 v{akx}, {1280-16}, v{t1}")
        A(f"v_add3_u32 v{akx}, v{akx}, v{ak}, 32    ; lane*40 + 32")
        A(f"v_add_u32 v{akxo}, s6, v{akx}")
        A(f"v_mov_b32 v{avo}, s7")
        A(f"v_cndmask_b32 v{avo}, v{avo}, 0, vcc")
        A(f"v_add_u32 v{avo}, v{avo}, v{av+30//G}")
    if not cfg.mfzero:
        for i in range(0,32,2): A(f"v_mov_b64 {v(Oa+i,2)}, 0")
    if cfg.obias is not None:
        for o in (Oa,Ob):
            for i in range(8): A(f"v_mov_b32 v{o+i}, {f32bits(cfg.obias):#x}")
            if cfg.obias_all:
                for i in range(8,16): A(f"v_mov_b32 v{o+i}, {f32bits(cfg.obias):#x}")
            else:
                A("s_mov_b32 exec_hi, 0")
                for i in range(8,12): A(f"v_mov_b32 v{o+i}, {f32bits(cfg.obias):#x}")
                A("s_mov_b64 exec, -1")
    if cfg.split0 and cfg.d23pos==2: d23()
    A(f"s_mul_i32 s5, s{sj}, 3072")
    A(f"s_add_u32 s6, s5, {KBASE}")
    A(f"s_add_u32 s7, s5, {VBASE}")
    A(f"s_cmp_eq_u32 s{skh}, 1")
    A("s_cselect_b32 s38, s6, s7")
    A("s_cselect_b32 s39, s7, s6")
    if cfg.blate:
        A("s_cbranch_scc1 L_go")
        A("L_q:")
    T=S[0]+16
    A("s_waitcnt vmcnt(3)")
    for i in range(5):
        A(f"v_lshlrev_b32 v{T+2*i}, 16, v{QR+i}")
        A(f"v_and_b32 v{T+2*i+1}, 0xffff0000, v{QR+i}")
    for i in range(5): A(f"v_pk_mul_f32 {v(T+2*i,2)}, {v(T+2*i,2)}, s[8:9]")
    for i in range(5): A(f"v_cvt_pk_bf16_f32 v{QR+i}, v{T+2*i}, v{T+2*i+1}")
    A(f"ds_write_b128 v{qw}, {v(QR,4)}")
    A(f"ds_write_b32 v{qw2}, v{QR+4} offset:1024")
    A(f"s_setprio {cfg.prio0}")
    A(f"s_waitcnt vmcnt({2 if cfg.split0 else 0}) lgkmcnt(0)")
    A("s_barrier")
    stamp(3); prof(44)
    if cfg.split0:
        A("s_cbranch_scc0 L_a0")
        A("s_waitcnt vmcnt(0)")
        A("s_barrier                              ; b0b")
        A("L_a0:")
    if cfg.blate:
        A("s_cbranch_scc1 L_setup")
        A("L_go:")
    A(f"ds_read_b64 {v(K8[0],2)}, v{ak8} offset:16")
    A(f"ds_read_b64 {v(Q8,2)}, v{q8}")
    A(f"ds_read_b64 {v(K16[0],2)}, v{ak}")
    A(f"ds_read_b64 {v(K16[0]+2,2)}, v{ak} offset:8")
    A(f"ds_read_b64 {v(Qa16,2)}, v{qa}")
    A(f"ds_read_b64 {v(Qa16+2,2)}, v{qa} offset:8")
    A(f"ds_read_b64 {v(Qb16,2)}, v{qb}")
    A(f"ds_read_b64 {v(Qb16+2,2)}, v{qb} offset:8")
    if cfg.bdelay:
        A("s_cbranch_scc0 L_nd")
        for i in range(cfg.bdelay): A("s_nop 15")
        A("L_nd:")
    A("s_waitcnt lgkmcnt(6)")
    mf2b(S[0],K8[0],Q8)
    rdK(1,1)
    rdV(0,V[0])
    A(f"s_nop {cfg.pnop[0]}")
    A("s_waitcnt lgkmcnt(7)")
    mf16(S[0],K16[0],Qa16)
    stamp(4); prof(46)
    if cfg.stamps: A("s_memtime s[64:65]")
    A(f"s_nop {cfg.pnop[1]}")
    XW=t0; XR=t1
    X=Oa if cfg.xtail else S[0]
    if cfg.align is not None:
        A(".p2align 3, , 4") if False else None
        A(".p2alignl 6, 0xbf800000") if cfg.align>=64 else A(".p2alignl 3, 0xbf800000")
        if cfg.align%8==4: A("s_nop 0")
    A("L_loop:")
    for t in range(32):
        p=t&1;q=p^1
        Sa=S[p];Sb=Sa+16;Na=S[q];Nb=Na+16
        A(f"; ---- step {t}")
        def W():
            A("s_waitcnt lgkmcnt(0)")
            if cfg.prof and t%2==0: A(f"s_memtime s[{68+t}:{69+t}]")
            if t in cfg.prio: A(f"s_setprio {cfg.prio[t]}")
            elif cfg.wpad: A("s_nop 0")
            if cfg.split0 and t==cfg.b0bstep:
                A("s_cbranch_scc1 L_b0b")
                A("s_waitcnt vmcnt(0)")
                A("s_barrier                              ; b0b")
                A("L_b0b:")
            for (st,cond,nm,k) in ((cfg.abar0,1,"a0",9),(cfg.bbar0,0,"b0",9),(cfg.abar,1,"a1",7),(cfg.bbar,0,"b1",7)):
                if t==st and getattr(cfg,nm[0]+"pos"+nm[1]) is None:
                    A(f"s_cbranch_scc{cond} L_n{nm}")
                    stamp(k)
                    A("s_barrier")
                    stamp(k+1)
                    A(f"L_n{nm}:")
        def grp(g):
            if g=="W": W()
            if g=="K" and cfg.xtail and t>=28:
                rdK16(t+2,p,ak)
                A(f"ds_read_b64 {v(K8[p],2)}, v{akx if t==28 else akxo} offset:{1280*30}")
            elif g=="K" and t+2<32: rdK(t+2,p)
            if g[0]=="V" and t+1<32: rdV(t+1,V[q],{"V":(0,4),"V0":(0,2),"V1":(2,4)}[g])
        def ex(lo,hi):
            for e in range(lo,hi): A(f"v_exp_f32 v{Sa+e}, v{Sa+e}")
        if t<(30 if cfg.xtail else 31):
            xt=cfg.xtail and t==29
            M=[lambda:mf16(Sb,K16[p],Qb16),
               (lambda:smf(Ob,V[q]+4,Nb+8)) if t>0 else None,
               (lambda:mf2x(Na,K8[q],Q8)) if xt else (lambda:mf2b(Na,K8[q],Q8)),
               lambda:smf(Oa,V[p],Sa),
               lambda:smf(Oa,V[p]+4,Sa+8),
               lambda:mf16(Na,K16[q],Qb16 if xt else Qa16),
               lambda:smf(Ob,V[p],Sb)]
            pat=cfg.pat
            cc=[sum(pat[:i]) for i in range(8)]
            assert cc[7]==32 and cc[3]>=10 and cc[4]>=18 and cc[6]>=26 and pat[0]>=1
            e=0
            for i in range(7):
                if M[i]: M[i]()
                for k in range(pat[i]+1):
                    isb=t in (cfg.abar0,cfg.bbar0,cfg.abar,cfg.bbar) and cfg.barpos is not None
                    if isb and (i,k)==cfg.barpos: grp("W")
                    for (st,cond,nm) in ((cfg.abar0,1,"a0"),(cfg.bbar0,0,"b0"),(cfg.abar,1,"a1"),(cfg.bbar,0,"b1")):
                        ps=getattr(cfg,nm[0]+"pos"+nm[1])
                        if ps is not None and t==st-1 and (i,k)==ps:
                            assert (i,k)>(1,3)
                            A(f"s_cbranch_scc{cond} L_n{nm}")
                            A("s_barrier")
                            A(f"L_n{nm}:")
                    for g in cfg.lds.get((i,k),[]):
                        if not (isb and g=="W"): grp(g)
                    if k<pat[i]:
                        ex(e,e+1); e+=1
            if xt:
                assert sum(pat[4:])>=6
                A(f"v_add_u32 v{XW}, s38, v{vlane16}")
                for k in range(3): A(f"ds_write_b128 v{XW}, {v(Oa+4*k,4)} offset:{1024*k}")
        elif cfg.xtail:
            def xch():
                A("s_barrier")
                prof(50)
                for i in (2,0,1): A(f"ds_read_b128 {v(X+4*i,4)}, v{XR} offset:{1024*i}")
            if t==30:
                A("s_waitcnt lgkmcnt(3)")
                if cfg.prof: A(f"s_memtime s[{68+t}:{69+t}]")
                if t in cfg.prio: A(f"s_setprio {cfg.prio[t]}")
                mf16(Sb,K16[1],Qb16); ex(0,3)
                smf(Ob,V[1]+4,Nb+8); ex(3,6)
                rdK16(30,0,ako); rdV(31,V[1]); rdK16(31,1,ako)
                ex(6,12)
                mf2x(Na,K8[1],Q8); ex(12,20)
                smf(Ob,V[0],Sa); ex(20,23)
                smf(Ob,V[0]+4,Sa+8); ex(23,26)
                A("s_waitcnt lgkmcnt(0)")
                rdV(30,V[0],areg=avo)
                mf16(Na,K16[0],Qb16)
                if cfg.xbarpos in (3,4):
                    A("s_cbranch_scc0 L_x1"); A("s_barrier"); A("L_x1:")
                ex(26,29)
                smf(Ob,V[1],Sb); ex(29,32)
                A(f"v_add_u32 v{XR}, s39, v{vlane16}")
            else:
                if t in cfg.prio: A(f"s_setprio {cfg.prio[t]}")
                def xrd():
                    for i in (2,0,1): A(f"ds_read_b128 {v(X+4*i,4)}, v{XR} offset:{1024*i}")
                if cfg.xbarpos==0: xch()
                mf16(Sb,K16[1],Qb16)
                if cfg.xbarpos==2:
                    A("s_cbranch_scc0 L_x1"); A("s_barrier"); A("L_x1:")
                ex(0,3)
                smf(Ob,V[1]+4,Nb+8); ex(3,6)
                if cfg.xbarpos==3:
                    A("s_cbranch_scc1 L_x2"); A("s_barrier"); A("L_x2:")
                rdV(31,V[1],areg=avo)
                ex(6,10)
                A(f"s_waitcnt lgkmcnt({7 if cfg.xbarpos==0 else 4})")
                smf(Ob,V[0],Sa); ex(10,18)
                if cfg.xbarpos==1: xch()
                if cfg.xbarpos in (2,4):
                    A("s_cbranch_scc1 L_x2"); A("s_barrier"); A("L_x2:")
                if cfg.xbarpos>=2: xrd()
                smf(Ob,V[0]+4,Sa+8); ex(18,26)
                if not cfg.preadd:
                    A(f"s_waitcnt lgkmcnt({0 if cfg.xbarpos==0 else 3})")
                    smf(Ob,V[1],Sb); ex(26,32)
                    A("s_nop 1")
                    smf(Ob,V[1]+4,Sb+8)
                else:
                    A(f"s_waitcnt lgkmcnt({0 if cfg.xbarpos==0 else 3})")
                    smf(Ob,V[1],Sb); ex(26,32)
                    A("s_waitcnt lgkmcnt(0)")
                    for i in range(0,12,2): A(f"v_pk_add_f32 {v(X+i,2)}, {v(Ob+i,2)}, {v(X+i,2)}")
                    A(f"v_add_u32 v{XW}, s39, v{vq}")
                    A("s_nop 0")
                    smf(X,V[1]+4,Sb+8)
        else:
            mf16(Sb,K16[p],Qb16); ex(0,3)
            smf(Ob,V[q]+4,Nb+8); ex(3,6)
            W()
            ex(6,10)
            smf(Oa,V[p],Sa); ex(10,18)
            smf(Oa,V[p]+4,Sa+8); ex(18,23)
            A(f"v_add_u32 v{XW}, s38, v{vlane16}")
            A(f"v_add_u32 v{XR}, s39, v{vlane16}")
            ex(23,24)
            for k in range(3): A(f"ds_write_b128 v{XW}, {v(Oa+4*k,4)} offset:{1024*k}")
            ex(24,26)
            smf(Ob,V[p],Sb)
            if cfg.earlybar:
                ex(26,28)
                A("s_waitcnt lgkmcnt(0)")
                A("s_barrier")
                prof(50)
                for i in (2,0,1): A(f"ds_read_b128 {v(X+4*i,4)}, v{XR} offset:{1024*i}")
                ex(28,32)
            else: ex(26,32)
            A("s_nop 1")
            smf(Ob,V[p]+4,Sb+8)
    stamp(5); prof(48)
    if cfg.stamps: A("s_memtime s[66:67]")
    if not cfg.earlybar:
        A("s_waitcnt lgkmcnt(0)")
        A("s_barrier")
        prof(50)
        for i in (2,0,1): A(f"ds_read_b128 {v(X+4*i,4)}, v{XR} offset:{1024*i}")
        A(f"v_add_u32 v{XW}, s39, v{vq}")
        A("s_nop 5")
    elif not cfg.preadd:
        A(f"v_add_u32 v{XW}, s39, v{vq}")
        A(f"s_nop {cfg.dnop}")
    lsum=(S[0] if cfg.preadd else X+12); l2=lsum+1; rc=lsum+2
    if not cfg.preadd:
        A("s_waitcnt lgkmcnt(0)")
        A(f"v_add_f32 v{l2}, v{Ob+8}, v{X+8}")
        A(f"v_add_f32 v{lsum}, v{Ob+8}, v{X+8}")
        for i in (0,2): A(f"v_pk_add_f32 {v(X+i,2)}, {v(Ob+i,2)}, {v(X+i,2)}")
        A("L_norm:")
        A(f"v_permlane32_swap_b32 v{l2}, v{lsum}")
        for i in (4,6): A(f"v_pk_add_f32 {v(X+i,2)}, {v(Ob+i,2)}, {v(X+i,2)}")
        A(f"v_rcp_f32 v{rc}, v{lsum}")
        for i in (8,10): A(f"v_pk_add_f32 {v(X+i,2)}, {v(Ob+i,2)}, {v(X+i,2)}")
    else:
        A(f"s_nop {cfg.dnop+2}")
        A("L_norm:")
        A(f"v_mov_b32 v{l2}, v{X+8}")
        A(f"v_mov_b32 v{lsum}, v{X+8}")
        A("s_nop 1")
        A(f"v_permlane32_swap_b32 v{l2}, v{lsum}")
        A("s_nop 0")
        A(f"v_rcp_f32 v{rc}, v{lsum}")
        A("s_nop 0")
    P=S[0]+16; R=S[0]+24
    for i in range(0,8,2):
        A(f"v_pk_mul_f32 {v(X+i,2)}, {v(X+i,2)}, {v(rc,2)} op_sel_hi:[1,0]")
    for i in range(4): A(f"v_cvt_pk_bf16_f32 v{P+i}, v{X+2*i}, v{X+2*i+1}")
    A(f"ds_write2_b64 v{XW}, {v(P,2)}, {v(P+2,2)} offset0:0 offset1:1")
    for i in range(8,12,2):
        A(f"v_pk_mul_f32 {v(X+i,2)}, {v(X+i,2)}, {v(rc,2)} op_sel_hi:[1,0]")
    for i in range(4,6): A(f"v_cvt_pk_bf16_f32 v{P+i}, v{X+2*i}, v{X+2*i+1}")
    A("s_mov_b32 exec_hi, 0")
    A(f"ds_write_b64 v{XW}, {v(P+4,2)} offset:32")
    A("s_mov_b64 exec, -1")
    A(f"ds_read_b128 {v(R,4)}, v{XR}")
    A(f"ds_read_b128 {v(R+4,4)}, v{XR} offset:1024")
    def chk():
        A("; guard of the constant shift: redo with the true max unless 1 <= l < 2^100 and all outputs are finite")
        for i in (0,4,8): A(f"v_pk_add_f32 {v(X+i,2)}, {v(X+i,2)}, {v(X+i+2,2)}")
        A(f"v_cmp_nle_f32 vcc, 1.0, v{lsum}")
        A(f"v_pk_add_f32 {v(X,2)}, {v(X,2)}, {v(X+4,2)}")
        A(f"s_mov_b32 s5, {f32bits(2.0**100):#x}")
        A(f"v_pk_add_f32 {v(X,2)}, {v(X,2)}, {v(X+8,2)}")
        A(f"v_cmp_ngt_f32 s[6:7], s5, v{lsum}")
        A(f"v_add_f32 v{X}, v{X}, v{X+1}")
        A("s_or_b64 s[6:7], s[6:7], vcc")
        A("s_movk_i32 s5, 0x207")
        A(f"v_cmp_class_f32 vcc, v{X}, s5")
    if not cfg.chklate: chk()
    A("s_waitcnt lgkmcnt(1)")
    A(f"buffer_store_dwordx4 {v(R,4)}, v{vlane16}, {s(sO,4)}, s{sqb} offen {cfg.store_mod}")
    A("s_mov_b64 exec, 0xffff")
    A("s_waitcnt lgkmcnt(0)")
    A(f"buffer_store_dwordx4 {v(R+4,4)}, v{vlane16}, {s(sO,4)}, s{sqb} offen offset:1024 {cfg.store_mod}")
    A("s_mov_b64 exec, -1")
    if cfg.chklate: chk()
    A("s_or_b64 s[6:7], s[6:7], vcc")
    if cfg.force_fb: A("s_cmp_eq_u32 s2, s2")
    A("s_cbranch_scc1 L_fallback")
    A("L_done:")
    if cfg.stamps:
        A("s_waitcnt vmcnt(0)")
        stamp(6)
        A("s_waitcnt lgkmcnt(0)")
        A(f"s_lshl_b32 s5, s2, 3")
        A(f"s_add_u32 s5, s5, s{sw}")
        A(f"s_lshl_b32 s5, s5, 6")
        A(f"v_mov_b32 v{t0}, s5")
        A("s_mov_b64 exec, 1")
        A("s_sub_u32 s66, s66, s64")
        A(f"v_mov_b32 v{t1}, s66")
        A(f"global_store_dword v{t0}, v{t1}, s[36:37] offset:60")
        for i in range(11):
            A(f"v_mov_b32 v{t1}, s{sT+2*i}")
            A(f"global_store_dword v{t0}, v{t1}, s[36:37] offset:{4*i}")
    if cfg.prof:
        A("s_load_dwordx2 s[36:37], s[0:1], 40")
        A("s_memtime s[40:41]")
        A("s_waitcnt vmcnt(0)")
        A("s_memtime s[42:43]")
        A("s_waitcnt lgkmcnt(0)")
        A(f"s_lshl_b32 s5, s2, 3")
        A(f"s_add_u32 s5, s5, s{sw}")
        A(f"s_lshl_b32 s5, s5, 7")
        A(f"v_mov_b32 v{t0}, s5")
        A("s_mov_b64 exec, 1")
        for i,r in enumerate([44,46]+[68+2*k for k in range(16)]+[48,50,40,42]):
            A(f"v_mov_b32 v{t1}, s{r}")
            A(f"global_store_dword v{t0}, v{t1}, s[36:37] offset:{4*i}")
    if cfg.padk is not None:
        A("s_waitcnt vmcnt(0)")
        stamp(6)
        A("s_waitcnt lgkmcnt(0)")
        A(f"s_add_u32 s5, s{sT+2*cfg.padk}, 4000")
        A("L_spin:")
        A("s_memrealtime s[6:7]")
        A("s_waitcnt lgkmcnt(0)")
        A("s_sub_u32 s6, s6, s5")
        A("s_cmp_lt_i32 s6, 0")
        A("s_cbranch_scc1 L_spin")
    A("L_end:")
    A("s_endpgm")

    A("L_loader:")
    if cfg.lprio is not None: A(f"s_setprio {cfg.lprio}")
    if cfg.lones:
        A(f"v_mov_b32 v{S[0]}, 0x3f80")
        A(f"v_mov_b32 v{S[0]+1}, 0")
        A(f"v_mov_b32 v{S[0]+2}, 0x3f80")
        A(f"v_mov_b32 v{S[0]+3}, 0")
        for i in range(4): A(f"ds_write_b128 v{vlane16}, {v(S[0],4)} offset:{1024*i}")
    def kvprefetch():
        st=cfg.kvpf; n=10240//st
        for i in range(0,n,64):
            if n-i<64: A(f"s_mov_b64 exec, {(1<<(n-i))-1:#x}")
            A(f"s_add_u32 s5, s4, {i*st}")
            A(f"buffer_load_dword v{S[1]}, v{t0}, {s(sK,4)}, s5 offen")
            A(f"buffer_load_dword v{S[1]+1}, v{t0}, {s(sV,4)}, s5 offen")
        A("s_mov_b64 exec, -1")
    if cfg.kvpf: A(f"v_mul_u32_u24 v{t0}, {cfg.kvpf}, v0")
    A("s_waitcnt lgkmcnt(0)")
    if cfg.kvpf and cfg.pfpos==0: kvprefetch()
    def ldsaddr(kind,h,c): return (KBASE+h*KHALF+1024*c-2048) if kind=="K" else (VBASE+h*VHALF+1024*c)
    def runs(kind,h,c0,c1): return [(kind,h,c,min(4,c1-c)) for c in range(c0,c1,4)]
    import itertools
    def interleave(*ls): return [x for tup in itertools.zip_longest(*ls) for x in tup if x]
    first=interleave(runs("K",0,8,cfg.cA),runs("V",0,8,cfg.cA),runs("K",1,4,cfg.cB),runs("V",1,4,cfg.cB))
    NF=sum(r[3] for r in first)
    free=interleave(runs("K",0,cfg.cA,38),runs("V",0,cfg.cA,40),runs("K",1,cfg.cB,40),runs("V",1,cfg.cB,28))
    late=runs("K",0,38,40)+runs("V",1,28,40)
    n=0; done0=False; done1=False; doneb=False
    assert cfg.b0bstep<=1
    for (kind,h,c,cnt) in first+free+[None]+late if False else first+free:
        pass
    seq=first+free
    def emit(kind,h,c,cnt):
        A(f"s_mov_b32 m0, {ldsaddr(kind,h,c)}")
        A(f"s_add_u32 s5, s3, {h*VHALF+1024*c}")
        for i in range(cnt):
            A(f"buffer_load_dwordx4 v{vlane16}, {s(sK if kind=='K' else sV,4)}, s5 offen offset:{1024*i}{cfg.ntl} lds")
    for r in seq:
        if not done0 and n>=cfg.e0:
            A("s_barrier                              ; b0"); done0=True
            if cfg.kvpf and cfg.pfpos==1: kvprefetch()
        if cfg.split0 and done0 and not doneb and n>=cfg.eb:
            A("s_barrier                              ; b0b"); doneb=True
        if not done1 and n>=max(cfg.n1,NF):
            A(f"s_waitcnt vmcnt({min(63,n-NF)})")
            A("s_barrier                              ; b0'"); done1=True
        emit(*r); n+=r[3]
    assert done0
    if not done1:
        A(f"s_waitcnt vmcnt({min(63,n-NF)})")
        A("s_barrier                              ; b0'")
    for r in late: emit(*r); n+=r[3]
    assert n==160-24
    A("s_waitcnt vmcnt(0)")
    A("s_barrier                              ; b1")
    A("s_endpgm")

    A("L_fallback:")
    A(f"s_cmp_lg_u32 s{sflag}, 0")
    A("s_cbranch_scc1 L_done")
    A(f"s_mov_b32 s{sflag}, 1")
    FS=S[1]; m=Oa; mn=Oa+1; al=Oa+2; fa=Oa+3; q8z=Oa+4; tm=Oa+6
    STG=KBASE+KHALF
    A(f"s_lshl_b32 s5, s{sw}, 11")
    A(f"s_add_u32 s5, s5, {STG}")
    A("s_mov_b32 m0, s5")
    A(f"s_mul_i32 s6, s{skh}, {VHALF}")
    A("s_sub_u32 s5, s5, s6")
    A(f"s_sub_u32 s5, s5, {VBASE}")
    A(f"v_and_b32 v{tm}, 19, v0")
    A(f"v_cmp_lt_u32 vcc, 16, v{tm}")
    A(f"v_add_u32 v{fa}, s5, v{av}")
    A("s_nop 0")
    A(f"v_cndmask_b32 v{fa}, v{fa}, v{av}, vcc")
    A("v_cmp_lt_u32 vcc, 31, v0")
    A("s_nop 1")
    A(f"v_cndmask_b32 v{q8z}, 0, v{Q8}, vcc")
    A(f"v_cndmask_b32 v{q8z+1}, 0, v{Q8+1}, vcc")
    A(f"v_mov_b32 v{m}, 0xff7fffff")
    for i in range(0,16,2): A(f"v_mov_b64 {v(Ob+i,2)}, 0")
    A("s_mov_b32 s5, s3")
    A(f"s_add_u32 s6, s3, {HEADB}")
    A("L_fb:")
    A(f"buffer_load_dwordx4 {v(K16[0],4)}, v{vq}, {s(sK,4)}, s5 offen")
    A(f"buffer_load_dwordx2 {v(K8[0],2)}, v{vq}, {s(sK,4)}, s5 offen offset:16")
    A(f"buffer_load_dwordx4 v{vlane16}, {s(sV,4)}, s5 offen lds")
    A("s_mov_b64 exec, 0xffff")
    A(f"buffer_load_dwordx4 v{vlane16}, {s(sV,4)}, s5 offen offset:1024 lds")
    A("s_mov_b64 exec, -1")
    A("s_waitcnt vmcnt(0)")
    for j,o in enumerate([0,160,640,800]): A(f"ds_read_b64_tr_b16 {v(V[0]+2*j,2)}, v{fa} offset:{o}")
    A(f"v_mfma_f32_32x32x8_bf16 {v(FS,16)}, {v(K8[0],2)}, {v(q8z,2)}, 0")
    A("s_nop 11")
    mf16(FS,K16[0],Qb16)
    A("s_nop 15")
    A(f"v_max3_f32 v{mn}, v{FS}, v{FS+1}, v{m}")
    for i in range(2,16,2): A(f"v_max3_f32 v{mn}, v{FS+i}, v{FS+i+1}, v{mn}")
    A(f"v_mov_b32 v{tm}, v{mn}")
    A("s_nop 1")
    A(f"v_permlane32_swap_b32 v{tm}, v{mn}")
    A("s_nop 1")
    A(f"v_max_f32 v{mn}, v{mn}, v{tm}")
    A(f"v_sub_f32 v{al}, v{m}, v{mn}")
    A(f"v_exp_f32 v{al}, v{al}")
    A(f"v_mov_b32 v{m}, v{mn}")
    for i in range(16): A(f"v_sub_f32 v{FS+i}, v{FS+i}, v{mn}")
    for i in range(16): A(f"v_exp_f32 v{FS+i}, v{FS+i}")
    for i in range(12): A(f"v_mul_f32 v{Ob+i}, v{Ob+i}, v{al}")
    A("s_waitcnt lgkmcnt(0)")
    A("s_nop 1")
    smf(Ob,V[0],FS)
    smf(Ob,V[0]+4,FS+8)
    A("s_addk_i32 s5, 1280")
    A("s_cmp_lt_u32 s5, s6")
    A("s_cbranch_scc1 L_fb")
    A("s_nop 15")
    if cfg.preadd:
        for i in range(12): A(f"v_mov_b32 v{X+i}, v{Ob+i}")
    else:
        for i in range(4): A(f"v_mov_b32 v{X+i}, v{Ob+i}")
        for i in range(4,12): A(f"v_mov_b32 v{X+i}, 0")
        A(f"v_mov_b32 v{l2}, v{Ob+8}")
        A(f"v_mov_b32 v{lsum}, v{Ob+8}")
    A("s_nop 1")
    A("s_branch L_norm")
    A("L_codeend:")
    A(f".if (L_codeend - {NAME}_kernel) < {576*20+64}")
    A('.error "code prefetch would read past the kernel"')
    A(".endif")
    hdr=f"""; Fused attention forward, B=1 H=32 S=2048 Dh=20, bf16 in / bf16 out  (emitted by my generator gen/genY13.py)
; @launch grid=(256,1,1) block=(576,1,1) lds=163840
;
; One workgroup = one head x 256 query rows (the 8 workgroups of a head share wg%8, for L2 locality only).
.amdgcn_target "amdgcn-amd-amdhsa--gfx950"
.text
.globl {NAME}_kernel
.p2align 8
.type {NAME}_kernel,@function
{NAME}_kernel:
"""
    nv=(NV+7)//8*8
    ftr=f""".section .rodata,"a"
.p2align 6
.amdhsa_kernel {NAME}_kernel
  .amdhsa_next_free_vgpr {nv}
  .amdhsa_next_free_sgpr {102 if (cfg.prof or cfg.stamps or cfg.padk is not None) else 40}
  .amdhsa_accum_offset {nv}
  .amdhsa_group_segment_fixed_size 0
  .amdhsa_kernarg_size 48
  .amdhsa_user_sgpr_count 2
  .amdhsa_user_sgpr_kernarg_segment_ptr 1
  .amdhsa_system_sgpr_workgroup_id_x 1
{cfg.kd.replace('+',' ').replace(';',chr(10))}.end_amdhsa_kernel
"""
    body="\n".join((x if x.endswith(":") else "    "+x) for x in L)
    return hdr+body+"\n"+ftr
if __name__=="__main__":
    cfg=Cfg()
    out=sys.argv[1]
    for a in sys.argv[2:]:
        k,val=a.split("=",1)
        assert hasattr(cfg,k),k
        setattr(cfg,k,eval(val))
    open(out,"w").write(gen(cfg))
```

```python
import subprocess,sys
def mk(name,b,G,args,gen="genY13.py"):
    subprocess.check_call(["python3",gen,name+".s","padk=0"]+args)
    s=open(name+".s").read()
    key="    s_add_u32 s5, s40, 4000\n"
    assert key in s
    new=f"""    s_load_dwordx2 s[70:71], s[0:1], 32
    s_not_b32 s5, s40
    v_mov_b32 v3, 0
    v_mov_b32 v4, s5
    s_waitcnt lgkmcnt(0)
    s_mov_b64 exec, 1
    s_add_u32 s5, s40, 2200
L_spin1:
    s_memrealtime s[6:7]
    s_waitcnt lgkmcnt(0)
    s_sub_u32 s6, s6, s5
    s_cmp_lt_i32 s6, 0
    s_cbranch_scc1 L_spin1
    s_cmp_lg_u32 s24, 0
    s_cbranch_scc1 L_noat
    global_atomic_umax v3, v4, s[70:71] sc1
    s_waitcnt vmcnt(0)
L_noat:
    s_add_u32 s5, s40, 3200
L_spin0:
    s_memrealtime s[6:7]
    s_waitcnt lgkmcnt(0)
    s_sub_u32 s6, s6, s5
    s_cmp_lt_i32 s6, 0
    s_cbranch_scc1 L_spin0
    global_load_dword v4, v3, s[70:71] sc1
    s_waitcnt vmcnt(0)
    v_readfirstlane_b32 s72, v4
    s_not_b32 s72, s72
    s_sub_u32 s6, s{40+2*b}, s72
    s_mul_i32 s6, s6, {G}
    s_min_u32 s6, s6, 30000
    s_add_u32 s5, s72, 4000
    s_add_u32 s5, s5, s6
"""
    s=s.replace(key,new)
    open(name+".s","w").write(s)
    subprocess.check_call(["python3","mkco.py",name+".s","x.co"])
if __name__=="__main__":
    mk(sys.argv[1],int(sys.argv[2]),int(sys.argv[3]),sys.argv[4:])
```
